```python
import torch

def _softmax(x, axis=-1):
    return torch.softmax(x, dim=axis)

def _gelu(x):
    return torch.nn.functional.gelu(x, approximate='tanh')

def _silu(x):
    return torch.nn.functional.silu(x)

def _sigmoid(x):
    return torch.sigmoid(x)

def _layernorm(x, axis=-1, eps=1e-05):
    m = x.mean(dim=axis, keepdim=True)
    v = x.var(dim=axis, keepdim=True, unbiased=False)
    return (x - m) / torch.sqrt(v + eps)

def _scatter_add(tgt, idx, src, axis=0):
    return tgt.clone().index_add_(axis, idx, src)

def _segment_sum(src, seg, n):
    out = torch.zeros((n,) + src.shape[1:], dtype=src.dtype)
    return out.index_add_(0, seg, src)

def _pad(x, pw):
    flat = tuple((v for pair in reversed(pw) for v in pair))
    return torch.nn.functional.pad(x, flat)
kernel_name = 'adaLN_cond__softmax_full_mha__dense_activation_silu__prompt'

def setup_inputs():

    _w = lambda a: (lambda t: t.to(torch.bfloat16) if t.is_floating_point() else t)(torch.as_tensor(a))

    def _A_setup():
        B, S, D = (1, 2048, 448)
        return {'x': _w((lambda *s: torch.randn(*s, dtype=torch.bfloat16) * 0.05)(B, S, D)), 'wqkv': _w((lambda *s: torch.randn(*s, dtype=torch.bfloat16) * 0.05)(D, 3 * D)), 'wo': _w((lambda *s: torch.randn(*s, dtype=torch.bfloat16) * 0.05)(D, D))}
    _A_in = _A_setup()

    def _B_setup():
        B, S, D, F = (1, 2048, 448, 1792)
        return {'x': _w((lambda *s: torch.randn(*s, dtype=torch.bfloat16) * 0.05)(B, S, D)), 'w1': _w((lambda *s: torch.randn(*s, dtype=torch.bfloat16) * 3.2)(D, F) * D ** (-0.5)), 'w2': _w((lambda *s: torch.randn(*s, dtype=torch.bfloat16) * 0.2)(F, D) * F ** (-0.5))}
    _B_in = _B_setup()
    return {'A_x': _A_in['x'], 'A_wqkv': _A_in['wqkv'], 'A_wo': _A_in['wo'], 'B_x': _B_in['x'], 'B_w1': _B_in['w1'], 'B_w2': _B_in['w2'], 'c': _w((lambda *s: torch.randn(*s, dtype=torch.bfloat16) * 0.1)(1, 448) * 8.0), 'w_mod': _w((lambda *s: torch.randn(*s, dtype=torch.bfloat16) * 0.1)(448, 6 * 448) * 448 ** (-0.5) * 8.0)}

def reference(A_x, A_wqkv, A_wo, B_x, B_w1, B_w2, c, w_mod):

    def _A_ref(x, wqkv, wo):
        B, S, D = x.shape
        H = 16
        Dh = D // H
        qkv = (lambda x, *d: x.permute(*d))((x @ wqkv).reshape(B, S, 3, H, Dh), 2, 0, 3, 1, 4)
        q, k, v = (qkv[0], qkv[1], qkv[2])
        scale = Dh ** (-0.5)
        scores = torch.einsum('bhqd,bhkd->bhqk', q, k) * scale
        p = _softmax(scores, axis=-1)
        o = torch.einsum('bhqk,bhkd->bhqd', p, v)
        return (lambda x, *d: x.permute(*d))(o, 0, 2, 1, 3).reshape(B, S, D) @ wo

    def _B_ref(x, w1, w2):
        h = torch.einsum('bsd,df->bsf', x, w1)
        h = _silu(h)
        out = torch.einsum('bsf,fd->bsd', h, w2)
        return out
    x = A_x
    mod = (_silu(c) @ w_mod).reshape(c.shape[0], 6, 1, -1)
    sa, ca, ga, sb, cb, gb = (mod[:, 0].clone(), mod[:, 1].clone(), mod[:, 2].clone(), mod[:, 3].clone(), mod[:, 4].clone(), mod[:, 5].clone())
    h = _layernorm(x, axis=-1) * (1 + ca) + sa
    x = x + ga * _A_ref(h, A_wqkv, A_wo)
    h = _layernorm(x, axis=-1) * (1 + cb) + sb
    x = x + gb * _B_ref(h, B_w1, B_w2)
    return x
```

```python
import re

TRANS = ("v_exp_f32", "v_log_f32", "v_rcp_f32", "v_rsq_f32", "v_sqrt_f32", "v_sin_f32", "v_cos_f32")


def _split_ops(s):
    out, depth, cur = [], 0, ""
    for ch in s:
        if ch == "[":
            depth += 1
        if ch == "]":
            depth -= 1
        if ch == "," and depth == 0:
            out.append(cur.strip())
            cur = ""
        else:
            cur += ch
    if cur.strip():
        out.append(cur.strip())
    return out


_REG = re.compile(r"^-?(?:abs\()?([vsa])(\d+)\)?$")
_RNG = re.compile(r"^-?([vsa])\[(\d+):(\d+)\]$")


def regs_of(op):
    op = op.strip()
    op = op.split(" ")[0] if not op.startswith("abs") else op
    m = _REG.match(op)
    if m:
        return [(m.group(1), int(m.group(2)))]
    m = _RNG.match(op)
    if m:
        return [(m.group(1), k) for k in range(int(m.group(2)), int(m.group(3)) + 1)]
    if op == "vcc":
        return [("vcc", 0)]
    if op == "exec":
        return [("exec", 0)]
    if op == "m0":
        return [("m0", 0)]
    return []


class Ins:
    __slots__ = ("text", "op", "kind", "wr", "rd", "passes", "cregs", "states", "lds_dma", "wide_store")


def parse(text):
    t = text.split(";")[0].strip()
    ins = Ins()
    ins.text = text
    parts = t.split(None, 1)
    op = parts[0]
    ins.op = op
    ops = _split_ops(parts[1]) if len(parts) > 1 else []
    ins.wr, ins.rd, ins.passes, ins.cregs, ins.states = [], [], 0, [], 1
    ins.lds_dma = False
    ins.wide_store = False
    if op == "s_nop":
        ins.kind = "nop"
        ins.states = int(ops[0], 0) + 1
        return ins
    if op.startswith("v_mfma"):
        ins.kind = "mfma"
        ins.passes = 8 if "32x32" in op else 4
        ins.wr = regs_of(ops[0])
        ins.rd = regs_of(ops[1]) + regs_of(ops[2])
        ins.cregs = regs_of(ops[3])
        return ins
    if op.startswith("v_"):
        ins.kind = "trans" if op in TRANS else "valu"
        if op.startswith("v_cmp"):
            ins.wr = regs_of(ops[0])
            for o in ops[1:]:
                ins.rd += regs_of(o)
        elif op.startswith("v_permlane") and "swap" in op:
            ins.kind = "perm"
            ins.wr = regs_of(ops[0]) + regs_of(ops[1])
            ins.rd = list(ins.wr)
        elif op.startswith("v_readfirstlane") or op.startswith("v_readlane"):
            ins.kind = "readlane"
            ins.wr = regs_of(ops[0])
            for o in ops[1:]:
                ins.rd += regs_of(o)
        else:
            ins.wr = regs_of(ops[0])
            rest = ops[1:]
            if op.startswith("v_add_co") or op.startswith("v_addc_co") or op.startswith("v_sub_co"):
                ins.wr += regs_of(ops[1])
                rest = ops[2:]
            for o in rest:
                ins.rd += regs_of(o)
            if op.startswith("v_fmac") or op.startswith("v_dot2c") or op.startswith("v_accvgpr_write") and False:
                ins.rd += regs_of(ops[0])
            if op == "v_cndmask_b32" and len(ops) == 3:
                ins.rd += [("vcc", 0)]
            if "dpp" in t or "row_" in t:
                ins.kind = "dpp"
        return ins
    if op.startswith("ds_"):
        ins.kind = "ds"
        if op.startswith("ds_read") or op.startswith("ds_bpermute") or op.startswith("ds_swizzle") or op.startswith("ds_permute"):
            ins.wr = regs_of(ops[0])
            for o in ops[1:]:
                ins.rd += regs_of(o)
        else:
            for o in ops:
                ins.rd += regs_of(o)
        return ins
    if op.startswith("buffer_") or op.startswith("global_") or op.startswith("flat_"):
        ins.kind = "vmem"
        is_lds = op.startswith("global_load_lds") or t.endswith(" lds") or " lds " in t
        if is_lds:
            ins.lds_dma = True
            for o in ops:
                ins.rd += regs_of(o)
            ins.rd += [("m0", 0)]
        elif "_load" in op:
            ins.wr = regs_of(ops[0])
            for o in ops[1:]:
                ins.rd += regs_of(o)
            if "d16" in op:
                ins.rd += regs_of(ops[0])
        else:
            for o in ops:
                ins.rd += regs_of(o)
            if "dwordx4" in op or "dwordx3" in op:
                ins.wide_store = True
                ins.cregs = regs_of(ops[0]) if op.startswith("buffer_") else regs_of(ops[1])
        return ins
    if op.startswith("s_"):
        ins.kind = "salu"
        if op in ("s_waitcnt", "s_barrier", "s_endpgm", "s_branch", "s_setprio", "s_sleep") or op.startswith("s_cbranch"):
            ins.kind = "sctl"
            return ins
        if op.startswith("s_cmp"):
            for o in ops:
                ins.rd += regs_of(o)
            return ins
        if op.startswith("s_load"):
            ins.kind = "smem"
        ins.wr = regs_of(ops[0]) if ops else []
        for o in ops[1:]:
            ins.rd += regs_of(o)
        if "saveexec" in op:
            ins.wr += [("exec", 0)]
        return ins
    ins.kind = "other"
    return ins


class Asm:
    def __init__(self):
        self.out = []
        self.hist = []
        self.pos = 0

    def raw(self, s):
        self.out.append(s)

    def comment(self, s):
        self.out.append("    ; " + s)

    def label(self, name):
        self.out.append(name + ":")

    def pad(self, n=16):
        while n > 0:
            k = min(n, 16)
            self._emit(parse("s_nop %d" % (k - 1)))
            n -= k

    def _emit(self, ins):
        self.out.append("    " + ins.text)
        self.hist.append((ins, self.pos))
        self.pos += ins.states
        if len(self.hist) > 40:
            self.hist.pop(0)

    def _need(self, c):
        need = 0
        crd, cwr = set(c.rd), set(c.wr)
        ccr = set(c.cregs) if c.kind == "mfma" else set()
        isvalu_c = c.kind in ("valu", "trans", "perm", "readlane", "dpp")
        for p, ppos in self.hist:
            dist = self.pos - (ppos + p.states)
            req = 0
            pwr = set(p.wr)
            pvalu = p.kind in ("valu", "trans", "perm", "readlane", "dpp")
            if pvalu:
                vw = {r for r in pwr if r[0] in "va" and r[0] != "vcc"}
                sw = {r for r in pwr if r[0] == "s" or r[0] == "vcc"}
                if c.kind == "mfma" and vw & (crd | ccr):
                    req = max(req, 2)
                if p.kind == "trans" and isvalu_c and c.kind != "trans" and vw & crd:
                    req = max(req, 1)
                if p.kind == "trans" and c.kind == "trans" and vw & crd:
                    req = max(req, 1)
                if c.kind == "readlane" and vw & crd:
                    req = max(req, 1)
                if c.kind in ("perm", "dpp") and vw & crd:
                    req = max(req, 2)
                if isvalu_c and sw & crd:
                    req = max(req, 2)
                if c.kind == "readlane" and sw & crd:
                    req = max(req, 4)
                if c.kind == "vmem" and sw & crd:
                    req = max(req, 5)
            if p.op.startswith("v_dot"):
                if c.op == p.op:
                    t = c.text.split(";")[0].split(None, 1)[1]
                    ab = set()
                    for o in _split_ops(t)[1:3]:
                        ab |= set(regs_of(o))
                    if pwr & ab:
                        req = max(req, 3)
                elif pwr & (crd | cwr):
                    req = max(req, 3)
            if p.kind == "mfma":
                n = p.passes
                if c.kind == "mfma":
                    if pwr & ccr:
                        same = (p.wr == c.cregs and p.passes == c.passes)
                        if not same:
                            req = max(req, n + 2)
                    if pwr & crd:
                        req = max(req, n + 4)
                elif c.kind in ("valu", "trans", "perm", "readlane", "dpp", "ds", "vmem"):
                    if pwr & (crd | cwr):
                        req = max(req, n + 4)
                    if isvalu_c and set(p.cregs) & cwr:
                        req = max(req, n - 1)
            if p.wide_store and set(p.cregs) & cwr:
                req = max(req, 2 if isvalu_c else 1)
            if p.kind == "salu" and ("m0", 0) in pwr and c.lds_dma:
                req = max(req, 1)
            if req > dist:
                need = max(need, req - dist)
        return need

    def i(self, text):
        ins = parse(text)
        n = self._need(ins)
        if n:
            self._emit(parse("s_nop %d" % (n - 1)))
        self._emit(ins)

    def text(self):
        return "\n".join(self.out) + "\n"
```

```python
import sys, os
sys.path.insert(0, os.path.dirname(__file__))
from asmgen import Asm

S, D, H, DH, F = 2048, 448, 16, 28, 1792
MOD = 0x0
STAT1 = 0x4000
UT1 = 0x8000
UT2 = 0x40000
ST2P = 0x80000
WQF = 0x100000
WOF = 0x280000
W1F = 0x300000
W2F = 0x500000
QKVF = 0x700000
OF = 0xD00000
X1F = 0xF00000
HIDF = 0x1100000
WS_END = 0x1800000

LOG2E = 1.4426950408889634
import struct


def f2u(x):
    return struct.unpack("<I", struct.pack("<f", x))[0]


def vr(a, n=1):
    return "v%d" % a if n == 1 else "v[%d:%d]" % (a, a + n - 1)


def sr(a, n=1):
    return "s%d" % a if n == 1 else "s[%d:%d]" % (a, a + n - 1)


def srd(a, base, ptr, size):
    a.i("s_mov_b32 s%d, s%d" % (base, ptr))
    a.i("s_mov_b32 s%d, s%d" % (base + 1, ptr + 1))
    a.i("s_mov_b32 s%d, 0x%x" % (base + 2, size))
    a.i("s_mov_b32 s%d, 0x00020000" % (base + 3))


def load_ptrs(a):
    a.i("s_load_dwordx16 s[16:31], s[0:1], 0")
    a.i("s_load_dwordx2 s[32:33], s[0:1], 64")
    a.i("s_load_dwordx2 s[34:35], s[0:1], 80")
    a.i("s_waitcnt lgkmcnt(0)")


P_X, P_WQKV, P_WO, P_BX, P_W1, P_W2, P_C, P_WMOD, P_OUT, P_WS = 16, 18, 20, 22, 24, 26, 28, 30, 32, 34


def header(a, name):
    a.raw(".globl %s" % name)
    a.raw(".p2align 8")
    a.raw(".type %s,@function" % name)
    a.label(name)


def descriptor(name, vgpr, sgpr=102, accum=None):
    if accum is None:
        accum = (min(vgpr, 256) + 3) // 4 * 4
    return """.amdhsa_kernel %s
  .amdhsa_next_free_vgpr %d
  .amdhsa_next_free_sgpr %d
  .amdhsa_accum_offset %d
  .amdhsa_group_segment_fixed_size 0
  .amdhsa_kernarg_size 88
  .amdhsa_user_sgpr_count 2
  .amdhsa_user_sgpr_kernarg_segment_ptr 1
  .amdhsa_system_sgpr_workgroup_id_x 1
.end_amdhsa_kernel
""" % (name, vgpr, sgpr, accum)


def round_bf16(a, v, tmp=None):
    a.i("v_cvt_pk_bf16_f32 %s, %s, %s" % (vr(v), vr(v), vr(v)))
    a.i("v_lshlrev_b32 %s, 16, %s" % (vr(v), vr(v)))


def gen_modslice(a, base0, base1, s_kt, add_one):
    a.i("v_bfe_u32 v1, v0, 3, 4")
    a.i("v_and_b32 v2, 7, v0")
    a.i("v_lshrrev_b32 v3, 7, v0")
    srd(a, 40, P_C, 896)
    srd(a, 44, P_WMOD, 448 * 5376)
    a.i("v_mul_u32_u24 v4, 56, v1")
    a.i("buffer_load_dwordx4 v[10:13], v4, s[40:43], 0 offen")
    a.i("buffer_load_dwordx4 v[14:17], v4, s[40:43], 0 offen offset:16")
    a.i("buffer_load_dwordx4 v[18:21], v4, s[40:43], 0 offen offset:32")
    a.i("buffer_load_dwordx2 v[22:23], v4, s[40:43], 0 offen offset:48")
    a.i("s_mov_b32 s50, %d" % (28 * 5376))
    a.i("v_mul_lo_u32 v5, s50, v1")
    a.i("v_lshl_add_u32 v5, v2, 3, v5")
    a.i("v_mov_b32 v6, %d" % (base0 * 2))
    a.i("v_mov_b32 v7, %d" % (base1 * 2))
    a.i("v_cmp_eq_u32 vcc, 0, v3")
    a.i("v_cndmask_b32 v6, v7, v6, vcc")
    a.i("v_add_u32 v5, v5, v6")
    a.i("s_lshl_b32 s50, s%d, 6" % s_kt)
    for i in range(28):
        a.i("buffer_load_dwordx2 v[%d:%d], v5, s[44:47], s50 offen" % (24 + 2 * i, 25 + 2 * i))
        if i < 27:
            a.i("s_add_u32 s50, s50, 5376")


def finish_modslice(a, nvm_after, add_one, to_global_bases=None, s_kt=None):
    a.i("s_waitcnt vmcnt(%d)" % (nvm_after + 28))
    a.i("s_mov_b32 s51, 0x%x" % f2u(-LOG2E))
    for i in range(28):
        src = 10 + i // 2
        d = 80 + i
        if i % 2 == 0:
            a.i("v_lshlrev_b32 v%d, 16, v%d" % (d, src))
        else:
            a.i("v_and_b32 v%d, 0xffff0000, v%d" % (d, src))
    for i in range(28):
        d = 80 + i
        a.i("v_mul_f32 v%d, s51, v%d" % (110 + i, d))
    for i in range(28):
        a.i("v_exp_f32 v%d, v%d" % (110 + i, 110 + i))
    for i in range(28):
        a.i("v_add_f32 v%d, 1.0, v%d" % (110 + i, 110 + i))
    for i in range(28):
        a.i("v_rcp_f32 v%d, v%d" % (110 + i, 110 + i))
    for i in range(28):
        a.i("v_mul_f32 v%d, v%d, v%d" % (80 + i, 80 + i, 110 + i))
    for i in range(28):
        round_bf16(a, 80 + i)
    for k in range(4):
        a.i("v_mov_b32 v%d, 0" % (140 + k))
    a.i("s_waitcnt vmcnt(%d)" % nvm_after)
    for i in range(28):
        w0, w1 = 24 + 2 * i, 25 + 2 * i
        a.i("v_lshlrev_b32 v144, 16, v%d" % w0)
        a.i("v_and_b32 v145, 0xffff0000, v%d" % w0)
        a.i("v_lshlrev_b32 v146, 16, v%d" % w1)
        a.i("v_and_b32 v147, 0xffff0000, v%d" % w1)
        for k in range(4):
            a.i("v_fmac_f32 v%d, v%d, v%d" % (140 + k, 80 + i, 144 + k))
    a.i("v_lshlrev_b32 v148, 4, v0")
    a.i("ds_write_b128 v148, v[140:143]")
    a.i("s_waitcnt lgkmcnt(0)")
    a.i("s_barrier")
    a.i("v_cmp_gt_u32 vcc, 64, v0")
    a.i("s_and_saveexec_b64 s[52:53], vcc")
    a.i("s_cbranch_execz MS_SKIP_%d" % a.uid)
    a.i("v_lshrrev_b32 v1, 5, v0")
    a.i("v_and_b32 v2, 31, v0")
    a.i("v_lshrrev_b32 v3, 2, v2")
    a.i("v_and_b32 v4, 3, v2")
    a.i("v_lshlrev_b32 v5, 11, v1")
    a.i("v_lshl_add_u32 v5, v3, 4, v5")
    a.i("v_lshl_add_u32 v5, v4, 2, v5")
    for ig in range(16):
        a.i("ds_read_b32 v%d, v5 offset:%d" % (150 + ig, ig * 128))
    a.i("s_waitcnt lgkmcnt(0)")
    for ig in range(1, 16):
        a.i("v_add_f32 v150, v150, v%d" % (150 + ig))
    round_bf16(a, 150)
    if to_global_bases is None:
        if add_one:
            a.i("v_add_f32 v151, 1.0, v150")
            round_bf16(a, 151)
            a.i("v_cmp_eq_u32 vcc, 0, v1")
            a.i("v_cndmask_b32 v150, v150, v151, vcc")
        a.i("v_lshlrev_b32 v6, 2, v0")
        a.i("ds_write_b32 v6, v150 offset:4096")
    else:
        b0, b1 = to_global_bases
        a.i("v_mov_b32 v6, %d" % (MOD + b0 * 4))
        a.i("v_mov_b32 v7, %d" % (MOD + b1 * 4))
        a.i("v_cmp_eq_u32 vcc, 0, v1")
        a.i("v_cndmask_b32 v6, v7, v6, vcc")
        a.i("v_lshl_add_u32 v6, v2, 2, v6")
        a.i("s_lshl_b32 s54, s%d, 7" % s_kt)
        a.i("buffer_store_dword v150, v6, s[36:39], s54 offen")
    a.label("MS_SKIP_%d" % a.uid)
    a.i("s_mov_b64 exec, s[52:53]")
    a.uid += 1
    if to_global_bases is None:
        a.i("s_waitcnt lgkmcnt(0)")
        a.i("s_barrier")


def gen_scaled(a, which):
    a.i("s_mul_i32 s4, s3, 4682")
    a.i("s_lshr_b32 s4, s4, 16")
    a.i("s_mul_i32 s5, s4, 14")
    a.i("s_sub_u32 s5, s3, s5")
    if which == "A":
        gen_modslice(a, 448, 0, 5, True)
    else:
        gen_modslice(a, 1792, 1344, 5, True)
    a.i("v_lshrrev_b32 v8, 6, v0")
    a.i("s_nop 0")
    a.i("v_readfirstlane_b32 s6, v8")
    a.i("v_and_b32 v244, 63, v0")
    a.i("v_and_b32 v245, 31, v0")
    a.i("v_bfe_u32 v246, v0, 5, 1")
    stride = 2688 if which == "A" else 3584
    hk = 8 if which == "A" else 4
    a.i("v_mul_u32_u24 v247, %d, v246" % (hk * stride))
    a.i("v_lshl_add_u32 v247, v245, 1, v247")
    if which == "A":
        a.i("v_cmp_gt_u32 vcc, 28, v245")
        a.i("v_mov_b32 v248, 0x40000000")
        a.i("v_cndmask_b32 v247, v248, v247, vcc")
        srd(a, 48, P_WQKV, 448 * 2688)
    else:
        srd(a, 48, P_W1, 448 * 3584)
    a.i("s_lshl_b32 s7, s4, 3")
    a.i("s_lshl_b32 s9, s6, 1")
    a.i("s_add_u32 s7, s7, s9")
    a.i("s_add_u32 s8, s7, 1")
    for tl in range(2):
        st = 7 + tl
        if which == "A":
            a.i("s_mul_i32 s12, s%d, 171" % st)
            a.i("s_lshr_b32 s12, s12, 9")
            a.i("s_mul_i32 s13, s12, 3")
            a.i("s_sub_u32 s13, s%d, s13" % st)
            a.i("s_mul_i32 s13, s13, 896")
            a.i("s_mul_i32 s12, s12, 56")
            a.i("s_add_u32 s%d, s12, s13" % (10 + tl))
        else:
            a.i("s_lshl_b32 s%d, s%d, 6" % (10 + tl, st))
    a.i("s_mul_i32 s14, s5, %d" % (32 * stride))
    for tl in range(2):
        for s in range(2):
            for j in range(8):
                if which == "A":
                    ko = 16 * s + j
                else:
                    ko = 16 * s + 8 * (j >> 2) + (j & 3)
                a.i("s_add_u32 s15, s14, s%d" % (10 + tl))
                if ko:
                    a.i("s_add_u32 s15, s15, %d" % (ko * stride))
                a.i("buffer_load_ushort v%d, v247, s[48:51], s15 offen" % (170 + tl * 16 + s * 8 + j))
    finish_modslice(a, 32, True)
    if which == "A":
        a.i("v_lshlrev_b32 v249, 5, v246")
        second = 16
    else:
        a.i("v_lshlrev_b32 v249, 4, v246")
        second = 32
    for r in range(2):
        for s in range(2):
            b = 210 + r * 16 + s * 8
            a.i("ds_read_b128 v[%d:%d], v249 offset:%d" % (b, b + 3, 4096 + r * 128 + s * 64))
            a.i("ds_read_b128 v[%d:%d], v249 offset:%d" % (b + 4, b + 7, 4096 + r * 128 + s * 64 + second))
    a.i("s_waitcnt vmcnt(0) lgkmcnt(0)")
    a.i("v_lshlrev_b32 v250, 4, v244")
    a.i("v_lshlrev_b32 v251, 2, v244")
    ntile = 48 if which == "A" else 56
    for tl in range(2):
        a.i("v_mov_b32 v150, 0")
        a.i("v_mov_b32 v151, 0")
        for s in range(2):
            wb = 170 + tl * 16 + s * 8
            for j in range(8):
                a.i("v_lshlrev_b32 v%d, 16, v%d" % (wb + j, wb + j))
            for j in range(8):
                a.i("v_fmac_f32 v151, v%d, v%d" % (wb + j, 226 + s * 8 + j))
            for j in range(8):
                a.i("v_mul_f32 v%d, v%d, v%d" % (wb + j, wb + j, 210 + s * 8 + j))
            for jj in range(4):
                a.i("v_cvt_pk_bf16_f32 v%d, v%d, v%d" % (152 + jj, wb + 2 * jj, wb + 2 * jj + 1))
            a.i("v_mov_b32 v156, 0x3f803f80")
            for jj in range(4):
                a.i("v_dot2_f32_bf16 v150, v%d, v156, v150" % (152 + jj))
            a.i("s_mul_i32 s15, s%d, 28" % (7 + tl))
            a.i("s_lshl_b32 s12, s5, 1")
            a.i("s_add_u32 s15, s15, s12")
            a.i("s_add_u32 s15, s15, %d" % s)
            a.i("s_lshl_b32 s15, s15, 10")
            a.i("s_add_u32 s15, s15, 0x%x" % (WQF if which == "A" else W1F))
            a.i("buffer_store_dwordx4 v[152:155], v250, s[36:39], s15 offen")
        a.i("v_permlane32_swap_b32 v150, v151")
        a.i("v_add_f32 v150, v150, v151")
        a.i("s_mul_i32 s15, s5, %d" % ntile)
        a.i("s_add_u32 s15, s15, s%d" % (7 + tl))
        a.i("s_lshl_b32 s15, s15, 8")
        a.i("s_add_u32 s15, s15, 0x%x" % (UT1 if which == "A" else UT2))
        a.i("buffer_store_dword v150, v251, s[36:39], s15 offen")
    a.i("s_endpgm")


def gen_plain(a, which):
    a.i("v_lshrrev_b32 v8, 6, v0")
    a.i("s_nop 0")
    a.i("v_readfirstlane_b32 s6, v8")
    a.i("v_and_b32 v1, 63, v0")
    a.i("v_and_b32 v2, 31, v0")
    a.i("v_bfe_u32 v3, v0, 5, 1")
    a.i("v_mul_u32_u24 v4, %d, v3" % (4 * 896))
    a.i("v_lshl_add_u32 v4, v2, 1, v4")
    a.i("v_mov_b32 v5, 0x40000000")
    a.i("v_cmp_eq_u32 vcc, 0, v3")
    a.i("v_cndmask_b32 v5, v5, v4, vcc")
    a.i("v_lshlrev_b32 v6, 4, v1")
    if which == "wo":
        srd(a, 48, P_WO, 448 * 896)
    else:
        srd(a, 48, P_W2, 1792 * 896)
    a.i("s_lshl_b32 s7, s3, 4")
    a.i("s_lshl_b32 s8, s6, 2")
    a.i("s_add_u32 s7, s7, s8")
    for q in range(4):
        a.i("s_add_u32 s8, s7, %d" % q)
        if which == "wo":
            a.i("s_lshr_b32 s9, s8, 5")
            a.i("s_and_b32 s10, s8, 31")
            a.i("s_lshr_b32 s10, s10, 1")
            a.i("s_mul_i32 s10, s10, %d" % (28 * 896))
            a.i("s_add_u32 s10, s10, %d" % ((q & 1) * 16 * 896))
        else:
            a.i("s_mul_i32 s9, s8, 9363")
            a.i("s_lshr_b32 s9, s9, 20")
            a.i("s_mul_i32 s10, s9, 112")
            a.i("s_sub_u32 s10, s8, s10")
            a.i("s_mul_i32 s10, s10, %d" % (16 * 896))
        a.i("s_lshl_b32 s11, s9, 6")
        a.i("s_add_u32 s10, s10, s11")
        a.i("s_add_u32 s11, s10, %d" % (8 * 896))
        for j in range(8):
            voff = "v4"
            if which == "wo" and (q & 1) == 1 and j >= 4:
                voff = "v5"
            a.i("buffer_load_ushort v%d, %s, s[48:51], s%d offen offset:%d" % (40 + q * 8 + j, voff, 10 if j < 4 else 11, (j & 3) * 896))
    a.i("s_waitcnt vmcnt(0)")
    for q in range(4):
        for jj in range(4):
            a.i("v_lshl_or_b32 v%d, v%d, 16, v%d" % (10 + q * 4 + jj, 40 + q * 8 + 2 * jj + 1, 40 + q * 8 + 2 * jj))
    a.i("s_lshl_b32 s8, s7, 10")
    a.i("s_add_u32 s8, s8, 0x%x" % (WOF if which == "wo" else W2F))
    for q in range(4):
        a.i("buffer_store_dwordx4 v[%d:%d], v6, s[36:39], s8 offen offset:%d" % (10 + 4 * q, 13 + 4 * q, q * 1024))
    a.i("s_endpgm")


def gen_stats(a):
    a.i("v_lshrrev_b32 v8, 6, v0")
    a.i("s_nop 0")
    a.i("v_readfirstlane_b32 s6, v8")
    a.i("v_and_b32 v2, 31, v0")
    a.i("v_bfe_u32 v3, v0, 5, 1")
    a.i("v_mul_u32_u24 v4, 896, v2")
    a.i("v_lshl_add_u32 v4, v3, 4, v4")
    srd(a, 48, P_X, S * 896)
    a.i("s_lshl_b32 s7, s3, 2")
    a.i("s_add_u32 s7, s7, s6")
    a.i("s_mul_i32 s8, s7, %d" % (32 * 896))
    for s in range(28):
        a.i("buffer_load_dwordx4 v[%d:%d], v4, s[48:51], s8 offen offset:%d" % (16 + 4 * s, 19 + 4 * s, 32 * s))
    a.i("v_mov_b32 v10, 0")
    a.i("v_mov_b32 v11, 0")
    a.i("v_mov_b32 v12, 0x3f803f80")
    a.i("s_waitcnt vmcnt(0)")
    for k in range(112):
        a.i("v_dot2_f32_bf16 v10, v%d, v12, v10" % (16 + k))
        a.i("v_dot2_f32_bf16 v11, v%d, v%d, v11" % (16 + k, 16 + k))
    a.i("v_permlane32_swap_b32 v10, v11")
    a.i("v_add_f32 v10, v10, v11")
    a.i("v_mov_b32 v11, v10")
    a.i("v_permlane32_swap_b32 v10, v11")
    a.i("s_mov_b32 s9, 0x%x" % f2u(1.0 / 448))
    a.i("v_mul_f32 v10, s9, v10")
    a.i("v_mul_f32 v11, s9, v11")
    a.i("v_fma_f32 v11, -v10, v10, v11")
    a.i("v_max_f32 v11, 0, v11")
    a.i("v_add_f32 v11, 0x%x, v11" % f2u(1e-5))
    a.i("v_rsq_f32 v12, v11")
    a.i("v_mul_f32 v13, v12, v10")
    a.i("v_sub_f32 v13, 0, v13")
    a.i("v_lshlrev_b32 v5, 3, v2")
    a.i("s_lshl_b32 s8, s7, 8")
    a.i("s_add_u32 s8, s8, 0x%x" % STAT1)
    a.i("v_cmp_gt_u32 vcc, 32, v1") if False else None
    a.i("buffer_store_dwordx2 v[12:13], v5, s[36:39], s8 offen")
    a.i("s_endpgm")


def gen_k1(a):
    name = "prep_kernel"
    header(a, name)
    a.i("s_cmp_ge_u32 s2, 338")
    a.i("s_cbranch_scc1 K1_END")
    load_ptrs(a)
    srd(a, 36, P_WS, WS_END)
    a.i("s_cmp_lt_u32 s2, 84")
    a.i("s_cbranch_scc1 K1_A")
    a.i("s_cmp_lt_u32 s2, 182")
    a.i("s_cbranch_scc1 K1_B")
    a.i("s_cmp_lt_u32 s2, 196")
    a.i("s_cbranch_scc1 K1_M")
    a.i("s_cmp_lt_u32 s2, 224")
    a.i("s_cbranch_scc1 K1_WO")
    a.i("s_cmp_lt_u32 s2, 322")
    a.i("s_cbranch_scc1 K1_W2")
    a.i("s_sub_u32 s3, s2, 322")
    gen_stats(a)
    a.label("K1_A")
    a.i("s_mov_b32 s3, s2")
    gen_scaled(a, "A")
    a.label("K1_B")
    a.i("s_sub_u32 s3, s2, 84")
    gen_scaled(a, "B")
    a.label("K1_M")
    a.i("s_sub_u32 s5, s2, 182")
    gen_modslice(a, 896, 2240, 5, False)
    finish_modslice(a, 0, False, to_global_bases=(896, 2240), s_kt=5)
    a.i("s_endpgm")
    a.label("K1_WO")
    a.i("s_sub_u32 s3, s2, 196")
    gen_plain(a, "wo")
    a.label("K1_W2")
    a.i("s_sub_u32 s3, s2, 224")
    gen_plain(a, "w2")
    a.label("K1_END")
    a.i("s_endpgm")
    return name, 256, "grid=(338,1,1) block=(256,1,1) lds=8192"


HEADER_COMMENT = """; Kernarg layout for this problem (88 bytes, ptrs only, base s[0:1]):
;   offset  16: d_in[2] A_wo  shape=(448, 448) dtype=bfloat16
;   offset  80: d_ws      workspace
"""


def build(kernels):
    a = Asm()
    a.uid = 0
    infos = []
    bodies = []
    for g in kernels:
        infos.append(g(a))
    txt = HEADER_COMMENT
    for name, vg, launch in infos:
        txt += "; @launch kernel=%s %s\n" % (name, launch)
    txt += '.amdgcn_target "amdgcn-amd-amdhsa--gfx950"\n.text\n'
    txt += a.text()
    txt += '.section .rodata,"a"\n'
    for name, vg, launch in infos:
        if isinstance(vg, tuple):
            d = descriptor(name, vg[0], accum=vg[1])
        else:
            d = descriptor(name, vg)
        txt += ".p2align 6\n" + d
    return txt


if __name__ == "__main__":
    ks = [gen_k1]
    import importlib
    for m in ("gen2", "gen3", "gen4"):
        try:
            ks += importlib.import_module(m).KERNELS
        except ImportError:
            pass
    out = sys.argv[1] if len(sys.argv) > 1 else "adaLN_cond__softmax_full_mha__dense_activation_silu__prompt.s"
    open(out, "w").write(build(ks))
    print("wrote", out)
```

```python
import sys, os
sys.path.insert(0, os.path.dirname(__file__))
from asmgen import Asm

S, D, H, DH, F = 2048, 448, 16, 28, 1792
MOD = 0x0
STAT1 = 0x4000
UT1 = 0x8000
UT2 = 0x40000
ST2P = 0x80000
WQF = 0x100000
WOF = 0x280000
W1F = 0x300000
W2F = 0x500000
QKVF = 0x700000
OF = 0xD00000
X1F = 0xF00000
HIDF = 0x1100000
XF = 0x1800000
WS_END = 0x1A00000

LOG2E = 1.4426950408889634
import struct


def f2u(x):
    return struct.unpack("<I", struct.pack("<f", x))[0]


def vr(a, n=1):
    return "v%d" % a if n == 1 else "v[%d:%d]" % (a, a + n - 1)


def sr(a, n=1):
    return "s%d" % a if n == 1 else "s[%d:%d]" % (a, a + n - 1)


def srd(a, base, ptr, size):
    a.i("s_mov_b32 s%d, s%d" % (base, ptr))
    a.i("s_mov_b32 s%d, s%d" % (base + 1, ptr + 1))
    a.i("s_mov_b32 s%d, 0x%x" % (base + 2, size))
    a.i("s_mov_b32 s%d, 0x00020000" % (base + 3))


def load_ptrs(a):
    a.i("s_load_dwordx16 s[16:31], s[0:1], 0")
    a.i("s_load_dwordx2 s[32:33], s[0:1], 64")
    a.i("s_load_dwordx2 s[34:35], s[0:1], 80")
    a.i("s_waitcnt lgkmcnt(0)")


P_X, P_WQKV, P_WO, P_BX, P_W1, P_W2, P_C, P_WMOD, P_OUT, P_WS = 16, 18, 20, 22, 24, 26, 28, 30, 32, 34


def header(a, name):
    a.raw(".globl %s" % name)
    a.raw(".p2align 8")
    a.raw(".type %s,@function" % name)
    a.label(name)


def descriptor(name, vgpr, sgpr=102, accum=None):
    if accum is None:
        accum = (min(vgpr, 256) + 3) // 4 * 4
    return """.amdhsa_kernel %s
  .amdhsa_next_free_vgpr %d
  .amdhsa_next_free_sgpr %d
  .amdhsa_accum_offset %d
  .amdhsa_group_segment_fixed_size 0
  .amdhsa_kernarg_size 88
  .amdhsa_user_sgpr_count 2
  .amdhsa_user_sgpr_kernarg_segment_ptr 1
  .amdhsa_system_sgpr_workgroup_id_x 1
.end_amdhsa_kernel
""" % (name, vgpr, sgpr, accum)


STAMPS = os.environ.get("STAMPS", "0") == "1"
DBGA = 0x2000000


def stamp(a, idx):
    if not STAMPS:
        return
    a.i("s_memtime s[60:61]")
    a.i("s_waitcnt lgkmcnt(0)")
    a.i("s_mov_b32 s%d, s60" % (64 + idx))


def stamps_out(a, kidx, nst, wreg=6):
    if not STAMPS:
        return
    srd(a, 92, P_WS, 0x4000000)
    a.i("s_lshl_b32 s60, s2, 3")
    a.i("s_add_u32 s60, s60, s%d" % wreg)
    a.i("s_lshl_b32 s60, s60, 6")
    a.i("s_add_u32 s60, s60, 0x%x" % (DBGA + kidx * 512 * 8 * 64))
    a.i("v_mov_b32 v15, 0")
    for i in range(nst):
        a.i("v_mov_b32 v14, s%d" % (64 + i))
        a.i("buffer_store_dword v14, v15, s[92:95], s60 offen offset:%d" % (4 * i))


def round_bf16(a, v, tmp=None):
    a.i("v_cvt_pk_bf16_f32 %s, %s, %s" % (vr(v), vr(v), vr(v)))
    a.i("v_lshlrev_b32 %s, 16, %s" % (vr(v), vr(v)))


def gen_modslice(a, base0, base1, s_kt, add_one):
    a.i("v_bfe_u32 v1, v0, 3, 4")
    a.i("v_and_b32 v2, 7, v0")
    a.i("v_lshrrev_b32 v3, 7, v0")
    srd(a, 40, P_C, 896)
    srd(a, 44, P_WMOD, 448 * 5376)
    a.i("v_lshlrev_b32 v4, 2, v0")
    a.i("buffer_load_dword v10, v4, s[40:43], 0 offen")
    a.i("s_mov_b32 s50, %d" % (28 * 5376))
    a.i("v_mul_lo_u32 v5, s50, v1")
    a.i("v_lshl_add_u32 v5, v2, 3, v5")
    a.i("v_mov_b32 v6, %d" % (base0 * 2))
    a.i("v_mov_b32 v7, %d" % (base1 * 2))
    a.i("v_cmp_eq_u32 vcc, 0, v3")
    a.i("v_cndmask_b32 v6, v7, v6, vcc")
    a.i("v_add_u32 v5, v5, v6")
    a.i("s_lshl_b32 s50, s%d, 6" % s_kt)
    for i in range(28):
        a.i("buffer_load_dwordx2 v[%d:%d], v5, s[44:47], s50 offen" % (24 + 2 * i, 25 + 2 * i))
        if i < 27:
            a.i("s_add_u32 s50, s50, 5376")


def finish_modslice(a, nvm_after, add_one, to_global_bases=None, s_kt=None):
    SIL = 4608
    a.i("s_waitcnt vmcnt(%d)" % (nvm_after + 28))
    a.i("s_mov_b32 s51, 0x%x" % f2u(-LOG2E))
    a.i("v_lshlrev_b32 v12, 16, v10")
    a.i("v_and_b32 v13, 0xffff0000, v10")
    for k in range(2):
        a.i("v_mul_f32 v%d, s51, v%d" % (14 + k, 12 + k))
    for k in range(2):
        a.i("v_exp_f32 v%d, v%d" % (14 + k, 14 + k))
    for k in range(2):
        a.i("v_add_f32 v%d, 1.0, v%d" % (14 + k, 14 + k))
    for k in range(2):
        a.i("v_rcp_f32 v%d, v%d" % (14 + k, 14 + k))
    for k in range(2):
        a.i("v_mul_f32 v%d, v%d, v%d" % (12 + k, 12 + k, 14 + k))
    a.i("v_cvt_pk_bf16_f32 v14, v12, v13")
    a.i("v_lshlrev_b32 v12, 16, v14")
    a.i("v_and_b32 v13, 0xffff0000, v14")
    a.i("v_lshlrev_b32 v4, 3, v0")
    a.i("ds_write_b64 v4, v[12:13] offset:%d" % SIL)
    a.i("s_waitcnt lgkmcnt(0)")
    a.i("s_barrier")
    a.i("v_mul_u32_u24 v4, 112, v1")
    for q in range(7):
        a.i("ds_read_b128 v[%d:%d], v4 offset:%d" % (80 + 4 * q, 83 + 4 * q, SIL + 16 * q))
    for k in range(4):
        a.i("v_mov_b32 v%d, 0" % (140 + k))
    a.i("s_waitcnt vmcnt(%d) lgkmcnt(0)" % nvm_after)
    for i in range(28):
        w0, w1 = 24 + 2 * i, 25 + 2 * i
        t = 144 + 4 * (i & 1)
        a.i("v_lshlrev_b32 v%d, 16, v%d" % (t, w0))
        a.i("v_and_b32 v%d, 0xffff0000, v%d" % (t + 1, w0))
        a.i("v_lshlrev_b32 v%d, 16, v%d" % (t + 2, w1))
        a.i("v_and_b32 v%d, 0xffff0000, v%d" % (t + 3, w1))
        for k in range(4):
            a.i("v_fmac_f32 v%d, v%d, v%d" % (140 + k, 80 + i, t + k))
    a.i("v_lshlrev_b32 v4, 4, v0")
    a.i("ds_write_b128 v4, v[140:143]")
    a.i("s_waitcnt lgkmcnt(0)")
    a.i("s_barrier")
    a.i("v_cmp_gt_u32 vcc, 64, v0")
    a.i("s_and_saveexec_b64 s[52:53], vcc")
    a.i("s_cbranch_execz MS_SKIP_%d" % a.uid)
    a.i("v_lshrrev_b32 v1, 5, v0")
    a.i("v_and_b32 v2, 31, v0")
    a.i("v_lshrrev_b32 v3, 2, v2")
    a.i("v_and_b32 v4, 3, v2")
    a.i("v_lshlrev_b32 v5, 11, v1")
    a.i("v_lshl_add_u32 v5, v3, 4, v5")
    a.i("v_lshl_add_u32 v5, v4, 2, v5")
    for ig in range(16):
        a.i("ds_read_b32 v%d, v5 offset:%d" % (80 + ig, ig * 128))
    a.i("s_waitcnt lgkmcnt(0)")
    for st in (8, 4, 2, 1):
        for ig in range(st):
            a.i("v_add_f32 v%d, v%d, v%d" % (80 + ig, 80 + ig, 80 + ig + st))
    round_bf16(a, 80)
    if to_global_bases is None:
        if add_one:
            a.i("v_add_f32 v81, 1.0, v80")
            round_bf16(a, 81)
            a.i("v_cmp_eq_u32 vcc, 0, v1")
            a.i("v_cndmask_b32 v80, v80, v81, vcc")
        a.i("v_lshlrev_b32 v6, 2, v0")
        a.i("ds_write_b32 v6, v80 offset:4096")
    else:
        b0, b1 = to_global_bases
        a.i("v_mov_b32 v6, %d" % (MOD + b0 * 4))
        a.i("v_mov_b32 v7, %d" % (MOD + b1 * 4))
        a.i("v_cmp_eq_u32 vcc, 0, v1")
        a.i("v_cndmask_b32 v6, v7, v6, vcc")
        a.i("v_lshl_add_u32 v6, v2, 2, v6")
        a.i("s_lshl_b32 s54, s%d, 7" % s_kt)
        a.i("buffer_store_dword v80, v6, s[36:39], s54 offen")
    a.label("MS_SKIP_%d" % a.uid)
    a.i("s_mov_b64 exec, s[52:53]")
    a.uid += 1
    if to_global_bases is None:
        a.i("s_waitcnt lgkmcnt(0)")
        a.i("s_barrier")


def gen_scaled(a, which):
    a.i("s_mul_i32 s4, s3, 4682")
    a.i("s_lshr_b32 s4, s4, 16")
    a.i("s_mul_i32 s5, s4, 14")
    a.i("s_sub_u32 s5, s3, s5")
    if which == "A":
        gen_modslice(a, 448, 0, 5, True)
    else:
        gen_modslice(a, 1792, 1344, 5, True)
    a.i("v_lshrrev_b32 v8, 6, v0")
    a.i("s_nop 0")
    a.i("v_readfirstlane_b32 s6, v8")
    a.i("v_and_b32 v244, 63, v0")
    a.i("v_and_b32 v245, 31, v0")
    a.i("v_bfe_u32 v246, v0, 5, 1")
    stride = 2688 if which == "A" else 3584
    hk = 8 if which == "A" else 4
    a.i("v_mul_u32_u24 v247, %d, v246" % (hk * stride))
    a.i("v_lshl_add_u32 v247, v245, 1, v247")
    if which == "A":
        a.i("v_cmp_gt_u32 vcc, 28, v245")
        a.i("v_mov_b32 v248, 0x40000000")
        a.i("v_cndmask_b32 v247, v248, v247, vcc")
        srd(a, 48, P_WQKV, 448 * 2688)
    else:
        srd(a, 48, P_W1, 448 * 3584)
    a.i("s_lshl_b32 s7, s4, 3")
    a.i("s_lshl_b32 s9, s6, 1")
    a.i("s_add_u32 s7, s7, s9")
    a.i("s_add_u32 s8, s7, 1")
    for tl in range(2):
        st = 7 + tl
        if which == "A":
            a.i("s_mul_i32 s12, s%d, 171" % st)
            a.i("s_lshr_b32 s12, s12, 9")
            a.i("s_mul_i32 s13, s12, 3")
            a.i("s_sub_u32 s13, s%d, s13" % st)
            a.i("s_mul_i32 s13, s13, 896")
            a.i("s_mul_i32 s12, s12, 56")
            a.i("s_add_u32 s%d, s12, s13" % (10 + tl))
        else:
            a.i("s_lshl_b32 s%d, s%d, 6" % (10 + tl, st))
    a.i("s_mul_i32 s14, s5, %d" % (32 * stride))
    for tl in range(2):
        for s in range(2):
            for j in range(8):
                if which == "A":
                    ko = 16 * s + j
                else:
                    ko = 16 * s + 8 * (j >> 2) + (j & 3)
                a.i("s_add_u32 s15, s14, s%d" % (10 + tl))
                if ko:
                    a.i("s_add_u32 s15, s15, %d" % (ko * stride))
                a.i("buffer_load_ushort v%d, v247, s[48:51], s15 offen" % (170 + tl * 16 + s * 8 + j))
    finish_modslice(a, 32, True)
    if which == "A":
        a.i("v_lshlrev_b32 v249, 5, v246")
        second = 16
    else:
        a.i("v_lshlrev_b32 v249, 4, v246")
        second = 32
    for r in range(2):
        for s in range(2):
            b = 210 + r * 16 + s * 8
            a.i("ds_read_b128 v[%d:%d], v249 offset:%d" % (b, b + 3, 4096 + r * 128 + s * 64))
            a.i("ds_read_b128 v[%d:%d], v249 offset:%d" % (b + 4, b + 7, 4096 + r * 128 + s * 64 + second))
    a.i("s_waitcnt vmcnt(0) lgkmcnt(0)")
    a.i("v_lshlrev_b32 v250, 4, v244")
    a.i("v_lshlrev_b32 v251, 2, v244")
    ntile = 48 if which == "A" else 56
    for tl in range(2):
        a.i("v_mov_b32 v150, 0")
        a.i("v_mov_b32 v151, 0")
        for s in range(2):
            wb = 170 + tl * 16 + s * 8
            for j in range(8):
                a.i("v_lshlrev_b32 v%d, 16, v%d" % (wb + j, wb + j))
            for j in range(8):
                a.i("v_fmac_f32 v151, v%d, v%d" % (wb + j, 226 + s * 8 + j))
            for j in range(8):
                a.i("v_mul_f32 v%d, v%d, v%d" % (wb + j, wb + j, 210 + s * 8 + j))
            for jj in range(4):
                a.i("v_cvt_pk_bf16_f32 v%d, v%d, v%d" % (152 + jj, wb + 2 * jj, wb + 2 * jj + 1))
            a.i("v_mov_b32 v156, 0x3f803f80")
            for jj in range(4):
                a.i("v_dot2_f32_bf16 v150, v%d, v156, v150" % (152 + jj))
            a.i("s_mul_i32 s15, s%d, 28" % (7 + tl))
            a.i("s_lshl_b32 s12, s5, 1")
            a.i("s_add_u32 s15, s15, s12")
            a.i("s_add_u32 s15, s15, %d" % s)
            a.i("s_lshl_b32 s15, s15, 10")
            a.i("s_add_u32 s15, s15, 0x%x" % (WQF if which == "A" else W1F))
            a.i("buffer_store_dwordx4 v[152:155], v250, s[36:39], s15 offen")
        a.i("v_permlane32_swap_b32 v150, v151")
        a.i("v_add_f32 v150, v150, v151")
        a.i("s_mul_i32 s15, s5, %d" % ntile)
        a.i("s_add_u32 s15, s15, s%d" % (7 + tl))
        a.i("s_lshl_b32 s15, s15, 8")
        a.i("s_add_u32 s15, s15, 0x%x" % (UT1 if which == "A" else UT2))
        a.i("buffer_store_dword v150, v251, s[36:39], s15 offen")
    a.i("s_endpgm")


def gen_plain(a, which):
    a.i("v_lshrrev_b32 v8, 6, v0")
    a.i("s_nop 0")
    a.i("v_readfirstlane_b32 s6, v8")
    a.i("v_and_b32 v1, 63, v0")
    a.i("v_and_b32 v2, 31, v0")
    a.i("v_bfe_u32 v3, v0, 5, 1")
    a.i("v_mul_u32_u24 v4, %d, v3" % (4 * 896))
    a.i("v_lshl_add_u32 v4, v2, 1, v4")
    a.i("v_mov_b32 v5, 0x40000000")
    a.i("v_cmp_eq_u32 vcc, 0, v3")
    a.i("v_cndmask_b32 v5, v5, v4, vcc")
    a.i("v_lshlrev_b32 v6, 4, v1")
    if which == "wo":
        srd(a, 48, P_WO, 448 * 896)
    else:
        srd(a, 48, P_W2, 1792 * 896)
    a.i("s_lshl_b32 s7, s3, 4")
    a.i("s_lshl_b32 s8, s6, 2")
    a.i("s_add_u32 s7, s7, s8")
    for q in range(4):
        a.i("s_add_u32 s8, s7, %d" % q)
        if which == "wo":
            a.i("s_lshr_b32 s9, s8, 5")
            a.i("s_and_b32 s10, s8, 31")
            a.i("s_lshr_b32 s10, s10, 1")
            a.i("s_mul_i32 s10, s10, %d" % (28 * 896))
            a.i("s_add_u32 s10, s10, %d" % ((q & 1) * 16 * 896))
        else:
            a.i("s_mul_i32 s9, s8, 9363")
            a.i("s_lshr_b32 s9, s9, 20")
            a.i("s_mul_i32 s10, s9, 112")
            a.i("s_sub_u32 s10, s8, s10")
            a.i("s_mul_i32 s10, s10, %d" % (16 * 896))
        a.i("s_lshl_b32 s11, s9, 6")
        a.i("s_add_u32 s10, s10, s11")
        a.i("s_add_u32 s11, s10, %d" % (8 * 896))
        for j in range(8):
            voff = "v4"
            if which == "wo" and (q & 1) == 1 and j >= 4:
                voff = "v5"
            a.i("buffer_load_ushort v%d, %s, s[48:51], s%d offen offset:%d" % (40 + q * 8 + j, voff, 10 if j < 4 else 11, (j & 3) * 896))
    a.i("s_waitcnt vmcnt(0)")
    for q in range(4):
        for jj in range(4):
            a.i("v_lshl_or_b32 v%d, v%d, 16, v%d" % (10 + q * 4 + jj, 40 + q * 8 + 2 * jj + 1, 40 + q * 8 + 2 * jj))
    a.i("s_lshl_b32 s8, s7, 10")
    a.i("s_add_u32 s8, s8, 0x%x" % (WOF if which == "wo" else W2F))
    for q in range(4):
        a.i("buffer_store_dwordx4 v[%d:%d], v6, s[36:39], s8 offen offset:%d" % (10 + 4 * q, 13 + 4 * q, q * 1024))
    a.i("s_endpgm")


def gen_stats(a):
    a.i("v_lshrrev_b32 v8, 6, v0")
    a.i("s_nop 0")
    a.i("v_readfirstlane_b32 s6, v8")
    a.i("v_and_b32 v1, 63, v0")
    a.i("v_and_b32 v2, 31, v0")
    a.i("v_bfe_u32 v3, v0, 5, 1")
    a.i("v_lshlrev_b32 v4, 4, v1")
    srd(a, 48, P_X, S * 896)
    a.i("s_mul_i32 s8, s3, %d" % (32 * 896))
    a.i("s_mul_i32 s9, s6, 7168")
    a.i("s_add_u32 s8, s8, s9")
    a.i("s_add_u32 s9, s9, 1024")
    for i in range(7):
        a.i("s_mov_b32 m0, s9")
        a.i("buffer_load_dwordx4 v4, s[48:51], s8 offen lds")
        if i < 6:
            a.i("s_add_u32 s8, s8, 1024")
            a.i("s_add_u32 s9, s9, 1024")
    a.i("v_mul_u32_u24 v5, 896, v2")
    a.i("v_lshl_add_u32 v5, v3, 4, v5")
    a.i("s_mul_i32 s9, s6, 224")
    a.i("v_add_u32 v5, s9, v5")
    a.i("v_mov_b32 v10, 0")
    a.i("v_mov_b32 v11, 0")
    a.i("v_mov_b32 v12, 0x3f803f80")
    a.i("s_waitcnt vmcnt(0)")
    a.i("s_barrier")
    for s in range(7):
        a.i("ds_read_b128 v[%d:%d], v5 offset:%d" % (16 + 4 * s, 19 + 4 * s, 1024 + 32 * s))
    a.i("s_mul_i32 s8, s3, 28")
    a.i("s_mul_i32 s9, s6, 7")
    a.i("s_add_u32 s8, s8, s9")
    a.i("s_lshl_b32 s8, s8, 10")
    a.i("s_add_u32 s8, s8, 0x%x" % XF)
    a.i("s_add_u32 s9, s8, 4096")
    a.i("s_waitcnt lgkmcnt(0)")
    for s in range(7):
        a.i("buffer_store_dwordx4 v[%d:%d], v4, s[36:39], s%d offen offset:%d" % (16 + 4 * s, 19 + 4 * s, 8 if s < 4 else 9, (s & 3) * 1024))
    for k in range(28):
        a.i("v_dot2_f32_bf16 v10, v%d, v12, v10" % (16 + k))
        a.i("v_dot2_f32_bf16 v11, v%d, v%d, v11" % (16 + k, 16 + k))
    a.i("v_permlane32_swap_b32 v10, v11")
    a.i("v_add_f32 v10, v10, v11")
    a.i("v_lshlrev_b32 v6, 2, v0")
    a.i("ds_write_b32 v6, v10")
    a.i("s_waitcnt lgkmcnt(0)")
    a.i("s_barrier")
    a.i("s_cmp_lg_u32 s6, 0")
    a.i("s_cbranch_scc1 K1_END")
    a.i("v_lshlrev_b32 v6, 2, v2")
    for w in range(4):
        a.i("ds_read_b32 v%d, v6 offset:%d" % (20 + w, w * 256))
        a.i("ds_read_b32 v%d, v6 offset:%d" % (24 + w, w * 256 + 128))
    a.i("s_waitcnt lgkmcnt(0)")
    a.i("v_add_f32 v20, v20, v21")
    a.i("v_add_f32 v22, v22, v23")
    a.i("v_add_f32 v10, v20, v22")
    a.i("v_add_f32 v24, v24, v25")
    a.i("v_add_f32 v26, v26, v27")
    a.i("v_add_f32 v11, v24, v26")
    a.i("s_mov_b32 s9, 0x%x" % f2u(1.0 / 448))
    a.i("v_mul_f32 v10, s9, v10")
    a.i("v_mul_f32 v11, s9, v11")
    a.i("v_fma_f32 v11, -v10, v10, v11")
    a.i("v_max_f32 v11, 0, v11")
    a.i("v_add_f32 v11, 0x%x, v11" % f2u(1e-5))
    a.i("v_rsq_f32 v12, v11")
    a.i("v_mul_f32 v13, v12, v10")
    a.i("v_sub_f32 v13, 0, v13")
    a.i("v_lshlrev_b32 v5, 3, v2")
    a.i("s_lshl_b32 s8, s3, 8")
    a.i("s_add_u32 s8, s8, 0x%x" % STAT1)
    a.i("buffer_store_dwordx2 v[12:13], v5, s[36:39], s8 offen")
    a.i("s_endpgm")


def gen_k1(a):
    name = "prep_kernel"
    header(a, name)
    a.i("s_cmp_ge_u32 s2, 386")
    a.i("s_cbranch_scc1 K1_END")
    load_ptrs(a)
    srd(a, 36, P_WS, WS_END)
    a.i("s_cmp_lt_u32 s2, 84")
    a.i("s_cbranch_scc1 K1_A")
    a.i("s_cmp_lt_u32 s2, 148")
    a.i("s_cbranch_scc1 K1_S")
    a.i("s_cmp_lt_u32 s2, 246")
    a.i("s_cbranch_scc1 K1_B")
    a.i("s_cmp_lt_u32 s2, 260")
    a.i("s_cbranch_scc1 K1_M")
    a.i("s_cmp_lt_u32 s2, 288")
    a.i("s_cbranch_scc1 K1_WO")
    a.i("s_sub_u32 s3, s2, 288")
    gen_plain(a, "w2")
    a.label("K1_S")
    a.i("s_sub_u32 s3, s2, 84")
    gen_stats(a)
    a.label("K1_A")
    a.i("s_mov_b32 s3, s2")
    gen_scaled(a, "A")
    a.label("K1_B")
    a.i("s_sub_u32 s3, s2, 148")
    gen_scaled(a, "B")
    a.label("K1_M")
    a.i("s_sub_u32 s5, s2, 246")
    gen_modslice(a, 896, 2240, 5, False)
    finish_modslice(a, 0, False, to_global_bases=(896, 2240), s_kt=5)
    a.i("s_endpgm")
    a.label("K1_WO")
    a.i("s_sub_u32 s3, s2, 260")
    gen_plain(a, "wo")
    a.label("K1_END")
    a.i("s_endpgm")
    return name, 256, "grid=(386,1,1) block=(256,1,1) lds=29696"


HEADER_COMMENT = """; Kernarg layout for this problem (88 bytes, ptrs only, base s[0:1]):
;   offset  16: d_in[2] A_wo  shape=(448, 448) dtype=bfloat16
;   offset  80: d_ws      workspace
"""


def build(kernels):
    a = Asm()
    a.uid = 0
    infos = []
    bodies = []
    for g in kernels:
        infos.append(g(a))
    txt = HEADER_COMMENT
    for name, vg, launch in infos:
        txt += "; @launch kernel=%s %s\n" % (name, launch)
    txt += '.amdgcn_target "amdgcn-amd-amdhsa--gfx950"\n.text\n'
    txt += a.text()
    txt += '.section .rodata,"a"\n'
    for name, vg, launch in infos:
        if isinstance(vg, tuple):
            d = descriptor(name, vg[0], accum=vg[1])
        else:
            d = descriptor(name, vg)
        txt += ".p2align 6\n" + d
    return txt


if __name__ == "__main__":
    ks = [gen_k1]
    import importlib
    for m in ("gen2", "gen3", "gen4"):
        try:
            ks += importlib.import_module(m).KERNELS
        except ImportError:
            pass
    out = sys.argv[1] if len(sys.argv) > 1 else "adaLN_cond__softmax_full_mha__dense_activation_silu__prompt.s"
    open(out, "w").write(build(ks))
    print("wrote", out)
```

```python
import sys, os
sys.path.insert(0, os.path.dirname(__file__))
from asmgen import Asm

S, D, H, DH, F = 2048, 448, 16, 28, 1792
MOD = 0x0
STAT1 = 0x4000
UT1 = 0x8000
UT2 = 0x40000
ST2P = 0x80000
WQF = 0x100000
WOF = 0x280000
W1F = 0x300000
W2F = 0x500000
QKVF = 0x700000
OF = 0xD00000
X1F = 0xF00000
HIDF = 0x1100000
XF = 0x1800000
PART = 0x1A00000
WS_END = 0x1B00000

LOG2E = 1.4426950408889634
import struct


def f2u(x):
    return struct.unpack("<I", struct.pack("<f", x))[0]


def vr(a, n=1):
    return "v%d" % a if n == 1 else "v[%d:%d]" % (a, a + n - 1)


def sr(a, n=1):
    return "s%d" % a if n == 1 else "s[%d:%d]" % (a, a + n - 1)


def srd(a, base, ptr, size):
    a.i("s_mov_b32 s%d, s%d" % (base, ptr))
    a.i("s_mov_b32 s%d, s%d" % (base + 1, ptr + 1))
    a.i("s_mov_b32 s%d, 0x%x" % (base + 2, size))
    a.i("s_mov_b32 s%d, 0x00020000" % (base + 3))


def load_ptrs(a):
    a.i("s_load_dwordx16 s[16:31], s[0:1], 0")
    a.i("s_load_dwordx2 s[32:33], s[0:1], 64")
    a.i("s_load_dwordx2 s[34:35], s[0:1], 80")
    a.i("s_waitcnt lgkmcnt(0)")


P_X, P_WQKV, P_WO, P_BX, P_W1, P_W2, P_C, P_WMOD, P_OUT, P_WS = 16, 18, 20, 22, 24, 26, 28, 30, 32, 34


def header(a, name):
    a.raw(".globl %s" % name)
    a.raw(".p2align 8")
    a.raw(".type %s,@function" % name)
    a.label(name)


def descriptor(name, vgpr, sgpr=102, accum=None):
    if accum is None:
        accum = (min(vgpr, 256) + 3) // 4 * 4
    return """.amdhsa_kernel %s
  .amdhsa_next_free_vgpr %d
  .amdhsa_next_free_sgpr %d
  .amdhsa_accum_offset %d
  .amdhsa_group_segment_fixed_size 0
  .amdhsa_kernarg_size 88
  .amdhsa_user_sgpr_count 2
  .amdhsa_user_sgpr_kernarg_segment_ptr 1
  .amdhsa_system_sgpr_workgroup_id_x 1
.end_amdhsa_kernel
""" % (name, vgpr, sgpr, accum)


STAMPS = os.environ.get("STAMPS", "0") == "1"
DBGA = 0x2000000


def stamp(a, idx):
    if not STAMPS:
        return
    a.i("s_memtime s[60:61]")
    a.i("s_waitcnt lgkmcnt(0)")
    a.i("s_mov_b32 s%d, s60" % (64 + idx))


def stamps_out(a, kidx, nst, wreg=6):
    if not STAMPS:
        return
    srd(a, 92, P_WS, 0x4000000)
    a.i("s_lshl_b32 s60, s2, 3")
    a.i("s_add_u32 s60, s60, s%d" % wreg)
    a.i("s_lshl_b32 s60, s60, 6")
    a.i("s_add_u32 s60, s60, 0x%x" % (DBGA + kidx * 512 * 8 * 64))
    a.i("v_mov_b32 v15, 0")
    for i in range(nst):
        a.i("v_mov_b32 v14, s%d" % (64 + i))
        a.i("buffer_store_dword v14, v15, s[92:95], s60 offen offset:%d" % (4 * i))


def round_bf16(a, v, tmp=None):
    a.i("v_cvt_pk_bf16_f32 %s, %s, %s" % (vr(v), vr(v), vr(v)))
    a.i("v_lshlrev_b32 %s, 16, %s" % (vr(v), vr(v)))


def gen_modprod(a):
    srd(a, 40, P_C, 896)
    srd(a, 44, P_WMOD, 448 * 5376)
    a.i("s_mul_i32 s4, s3, 43")
    a.i("s_lshr_b32 s4, s4, 8")
    a.i("s_mul_i32 s5, s4, 6")
    a.i("s_sub_u32 s5, s3, s5")
    a.i("v_lshrrev_b32 v8, 6, v0")
    a.i("s_nop 0")
    a.i("v_readfirstlane_b32 s6, v8")
    a.i("v_and_b32 v1, 63, v0")
    a.i("s_mul_i32 s7, s4, 56")
    a.i("s_mul_i32 s8, s6, 14")
    a.i("s_add_u32 s7, s7, s8")
    a.i("v_mov_b32 v4, 0")
    a.i("s_lshl_b32 s9, s7, 1")
    for q in range(7):
        a.i("buffer_load_dword v%d, v4, s[40:43], s9 offen offset:%d" % (10 + q, 4 * q))
    a.i("s_lshl_b32 s10, s5, 10")
    a.i("v_lshlrev_b32 v5, 4, v1")
    a.i("v_add_u32 v5, s10, v5")
    a.i("v_cmp_gt_u32 vcc, 5376, v5")
    a.i("v_mov_b32 v6, 0x40000000")
    a.i("v_cndmask_b32 v5, v6, v5, vcc")
    a.i("s_mul_i32 s8, s7, 5376")
    for i in range(14):
        a.i("buffer_load_dwordx4 v[%d:%d], v5, s[44:47], s8 offen" % (24 + 4 * i, 27 + 4 * i))
        if i < 13:
            a.i("s_add_u32 s8, s8, 5376")
    a.i("s_waitcnt vmcnt(14)")
    a.i("s_mov_b32 s51, 0x%x" % f2u(-LOG2E))
    for q in range(7):
        a.i("v_lshlrev_b32 v%d, 16, v%d" % (80 + 2 * q, 10 + q))
        a.i("v_and_b32 v%d, 0xffff0000, v%d" % (81 + 2 * q, 10 + q))
    for k in range(14):
        a.i("v_mul_f32 v%d, s51, v%d" % (100 + k, 80 + k))
    for k in range(14):
        a.i("v_exp_f32 v%d, v%d" % (100 + k, 100 + k))
    for k in range(14):
        a.i("v_add_f32 v%d, 1.0, v%d" % (100 + k, 100 + k))
    for k in range(14):
        a.i("v_rcp_f32 v%d, v%d" % (100 + k, 100 + k))
    for k in range(14):
        a.i("v_mul_f32 v%d, v%d, v%d" % (80 + k, 80 + k, 100 + k))
    for q in range(7):
        a.i("v_cvt_pk_bf16_f32 v%d, v%d, v%d" % (100 + q, 80 + 2 * q, 81 + 2 * q))
    for q in range(7):
        a.i("v_lshlrev_b32 v%d, 16, v%d" % (80 + 2 * q, 100 + q))
        a.i("v_and_b32 v%d, 0xffff0000, v%d" % (81 + 2 * q, 100 + q))
    for k in range(8):
        a.i("v_mov_b32 v%d, 0" % (100 + k))
    for i in range(14):
        a.i("s_waitcnt vmcnt(%d)" % (13 - i))
        t = 110 + 8 * (i & 1)
        for d in range(4):
            w = 24 + 4 * i + d
            a.i("v_lshlrev_b32 v%d, 16, v%d" % (t + 2 * d, w))
            a.i("v_and_b32 v%d, 0xffff0000, v%d" % (t + 2 * d + 1, w))
        for k in range(8):
            a.i("v_fmac_f32 v%d, v%d, v%d" % (100 + k, 80 + i, t + k))
    a.i("v_lshlrev_b32 v4, 5, v0")
    a.i("ds_write_b128 v4, v[100:103]")
    a.i("ds_write_b128 v4, v[104:107] offset:16")
    a.i("s_waitcnt lgkmcnt(0)")
    a.i("s_barrier")
    a.i("v_lshlrev_b32 v4, 3, v0")
    for w in range(4):
        a.i("ds_read_b64 v[%d:%d], v4 offset:%d" % (20 + 2 * w, 21 + 2 * w, w * 2048))
    a.i("s_lshl_b32 s10, s5, 11")
    a.i("v_add_u32 v5, s10, v4")
    a.i("v_cmp_gt_u32 vcc, 10752, v5")
    a.i("v_cndmask_b32 v5, v6, v5, vcc")
    a.i("s_mul_i32 s8, s4, 10752")
    a.i("s_add_u32 s8, s8, 0x%x" % PART)
    a.i("s_waitcnt lgkmcnt(0)")
    for k in range(2):
        a.i("v_add_f32 v%d, v%d, v%d" % (20 + k, 20 + k, 22 + k))
        a.i("v_add_f32 v%d, v%d, v%d" % (24 + k, 24 + k, 26 + k))
        a.i("v_add_f32 v%d, v%d, v%d" % (20 + k, 20 + k, 24 + k))
    a.i("buffer_store_dwordx2 v[20:21], v5, s[36:39], s8 offen")
    a.i("s_endpgm")


def sum_mod(a, base0, base1, s_kt, add_one, to_global=False):
    a.i("s_cmp_lg_u32 s6, 0")
    a.i("s_cbranch_scc1 SM_SKIP_%d" % a.uid)
    a.i("v_and_b32 v12, 31, v0")
    a.i("v_bfe_u32 v13, v0, 5, 1")
    a.i("v_mov_b32 v14, %d" % (base0 * 4))
    a.i("v_mov_b32 v15, %d" % (base1 * 4))
    a.i("v_cmp_eq_u32 vcc, 0, v13")
    a.i("v_cndmask_b32 v14, v15, v14, vcc")
    a.i("v_lshl_add_u32 v14, v12, 2, v14")
    a.i("s_lshl_b32 s12, s%d, 7" % s_kt)
    a.i("s_add_u32 s13, s12, 0x%x" % PART)
    for rg in range(8):
        a.i("buffer_load_dword v%d, v14, s[36:39], s13 offen" % (20 + rg))
        if rg < 7:
            a.i("s_add_u32 s13, s13, 10752")
    a.i("s_waitcnt vmcnt(0)")
    for st in (4, 2, 1):
        for k in range(st):
            a.i("v_add_f32 v%d, v%d, v%d" % (20 + k, 20 + k, 20 + k + st))
    round_bf16(a, 20)
    if to_global:
        a.i("s_add_u32 s13, s12, 0x%x" % MOD)
        a.i("buffer_store_dword v20, v14, s[36:39], s13 offen")
    else:
        if add_one:
            a.i("v_add_f32 v21, 1.0, v20")
            round_bf16(a, 21)
            a.i("v_cndmask_b32 v20, v20, v21, vcc")
        a.i("v_lshlrev_b32 v15, 2, v0")
        a.i("ds_write_b32 v15, v20 offset:16384")
        a.i("s_waitcnt lgkmcnt(0)")
    a.label("SM_SKIP_%d" % a.uid)
    a.uid += 1
    if not to_global:
        a.i("s_waitcnt vmcnt(0)")
        a.i("s_barrier")


def tr_addr(a, vdst, pitch, hrows):
    a.i("v_bfe_u32 v8, v0, 2, 2")
    a.i("v_bfe_u32 v9, v0, 5, 1")
    a.i("v_mad_u32_u24 v8, v9, %d, v8" % hrows)
    a.i("v_mul_u32_u24 v%d, %d, v8" % (vdst, pitch))
    a.i("v_and_b32 v8, 3, v0")
    a.i("v_lshl_add_u32 v%d, v8, 3, v%d" % (vdst, vdst))
    a.i("v_bfe_u32 v8, v0, 4, 1")
    a.i("v_lshl_add_u32 v%d, v8, 5, v%d" % (vdst, vdst))


def gen_scaled(a, which):
    a.i("s_mul_i32 s4, s3, 4682")
    a.i("s_lshr_b32 s4, s4, 16")
    a.i("s_mul_i32 s5, s4, 14")
    a.i("s_sub_u32 s5, s3, s5")
    a.i("v_lshrrev_b32 v8, 6, v0")
    a.i("s_nop 0")
    a.i("v_readfirstlane_b32 s6, v8")
    a.i("v_and_b32 v244, 63, v0")
    a.i("v_and_b32 v245, 31, v0")
    a.i("v_bfe_u32 v246, v0, 5, 1")
    stride = 2688 if which == "A" else 3584
    if which == "A":
        srd(a, 48, P_WQKV, 448 * 2688)
        a.i("s_mul_i32 s7, s4, 448")
    else:
        srd(a, 48, P_W1, 448 * 3584)
        a.i("s_lshl_b32 s7, s4, 9")
    a.i("v_mul_u32_u24 v247, %d, v246" % stride)
    a.i("v_lshl_add_u32 v247, v245, 4, v247")
    a.i("s_lshl_b32 s8, s5, 5")
    a.i("s_lshl_b32 s9, s6, 3")
    a.i("s_add_u32 s8, s8, s9")
    a.i("s_mul_i32 s8, s8, %d" % stride)
    a.i("s_add_u32 s8, s8, s7")
    a.i("s_lshl_b32 s9, s6, 12")
    for i in range(4):
        a.i("s_mov_b32 m0, s9")
        a.i("buffer_load_dwordx4 v247, s[48:51], s8 offen lds")
        if i < 3:
            a.i("s_add_u32 s8, s8, %d" % (2 * stride))
            a.i("s_add_u32 s9, s9, 1024")
    hrows = 4
    tr_addr(a, 248, 512, hrows)
    csz = 56 if which == "A" else 64
    a.i("s_mul_i32 s9, s6, %d" % (2 * csz))
    a.i("v_add_u32 v248, s9, v248")
    if which == "B":
        sum_mod(a, 1792, 1344, 5, True)
        a.i("v_lshlrev_b32 v249, 4, v246")
        for r in range(2):
            for s in range(2):
                b = 210 + r * 16 + s * 8
                a.i("ds_read_b128 v[%d:%d], v249 offset:%d" % (b, b + 3, 16384 + r * 128 + s * 64))
                a.i("ds_read_b128 v[%d:%d], v249 offset:%d" % (b + 4, b + 7, 16384 + r * 128 + s * 64 + 32))
    else:
        a.i("s_waitcnt vmcnt(0)")
        a.i("s_barrier")
    r2 = 8
    for tl in range(2):
        for s in range(2):
            b = 100 + (tl * 2 + s) * 4
            off = tl * csz + 16 * s * 512
            a.i("ds_read_b64_tr_b16 v[%d:%d], v248 offset:%d" % (b, b + 1, off))
            a.i("ds_read_b64_tr_b16 v[%d:%d], v248 offset:%d" % (b + 2, b + 3, off + r2 * 512))
    a.i("v_lshlrev_b32 v250, 4, v244")
    a.i("v_lshlrev_b32 v251, 2, v244")
    a.i("v_cmp_gt_u32 s[58:59], 28, v245")
    a.i("s_waitcnt lgkmcnt(0)")
    if which == "A":
        for k in range(16):
            a.i("v_cndmask_b32 v%d, 0, v%d, s[58:59]" % (100 + k, 100 + k))
    ntile = 48 if which == "A" else 56
    for tl in range(2):
        if which == "A":
            a.i("s_and_b32 s12, s4, 1")
            a.i("s_lshl_b32 s12, s12, 3")
            a.i("s_lshl_b32 s13, s6, 1")
            a.i("s_add_u32 s12, s12, s13")
            a.i("s_add_u32 s12, s12, %d" % tl)
            a.i("s_mul_i32 s12, s12, 3")
            a.i("s_lshr_b32 s13, s4, 1")
            a.i("s_add_u32 s%d, s12, s13" % (10 + tl))
        else:
            a.i("s_lshl_b32 s12, s4, 3")
            a.i("s_lshl_b32 s13, s6, 1")
            a.i("s_add_u32 s12, s12, s13")
            a.i("s_add_u32 s%d, s12, %d" % (10 + tl, tl))
    if which == "B":
        a.i("v_mov_b32 v156, 0x3f803f80")
    for tl in range(2):
        if which == "B":
            a.i("v_mov_b32 v150, 0")
            a.i("v_mov_b32 v151, 0")
        for s in range(2):
            fb = 100 + (tl * 2 + s) * 4
            wb = 170
            if which == "B":
                for d in range(4):
                    a.i("v_lshlrev_b32 v%d, 16, v%d" % (wb + 2 * d, fb + d))
                    a.i("v_and_b32 v%d, 0xffff0000, v%d" % (wb + 2 * d + 1, fb + d))
                for j in range(8):
                    a.i("v_fmac_f32 v151, v%d, v%d" % (wb + j, 226 + s * 8 + j))
                for j in range(8):
                    a.i("v_mul_f32 v%d, v%d, v%d" % (wb + j, wb + j, 210 + s * 8 + j))
                for jj in range(4):
                    a.i("v_cvt_pk_bf16_f32 v%d, v%d, v%d" % (fb + jj, wb + 2 * jj, wb + 2 * jj + 1))
                for jj in range(4):
                    a.i("v_dot2_f32_bf16 v150, v%d, v156, v150" % (fb + jj))
            a.i("s_mul_i32 s15, s%d, 28" % (10 + tl))
            a.i("s_lshl_b32 s12, s5, 1")
            a.i("s_add_u32 s15, s15, s12")
            a.i("s_add_u32 s15, s15, %d" % s)
            a.i("s_lshl_b32 s15, s15, 10")
            a.i("s_add_u32 s15, s15, 0x%x" % (WQF if which == "A" else W1F))
            a.i("buffer_store_dwordx4 v[%d:%d], v250, s[36:39], s15 offen" % (fb, fb + 3))
        if which == "B":
            a.i("v_permlane32_swap_b32 v150, v151")
            a.i("v_add_f32 v150, v150, v151")
            a.i("s_mul_i32 s15, s5, %d" % ntile)
            a.i("s_add_u32 s15, s15, s%d" % (10 + tl))
            a.i("s_lshl_b32 s15, s15, 8")
            a.i("s_add_u32 s15, s15, 0x%x" % UT2)
            a.i("buffer_store_dword v150, v251, s[36:39], s15 offen")
    a.i("s_endpgm")


def gen_plain(a, which):
    a.i("v_lshrrev_b32 v8, 6, v0")
    a.i("s_nop 0")
    a.i("v_readfirstlane_b32 s6, v8")
    a.i("v_and_b32 v1, 63, v0")
    a.i("v_bfe_u32 v3, v0, 5, 1")
    a.i("v_lshlrev_b32 v6, 4, v1")
    nrow = 28 if which == "wo" else 32
    if which == "wo":
        srd(a, 48, P_WO, 448 * 896)
    else:
        srd(a, 48, P_W2, 1792 * 896)
    per = nrow // 4
    a.i("s_mul_i32 s8, s3, %d" % nrow)
    a.i("s_mul_i32 s9, s6, %d" % per)
    a.i("s_add_u32 s8, s8, s9")
    a.i("s_mul_i32 s8, s8, 896")
    a.i("s_lshl_b32 s9, s9, 10")
    for i in range(per):
        a.i("s_mov_b32 m0, s9")
        a.i("buffer_load_dwordx4 v6, s[48:51], s8 offen lds")
        if i < per - 1:
            a.i("s_add_u32 s8, s8, 896")
            a.i("s_add_u32 s9, s9, 1024")
    tr_addr(a, 5, 1024, 4)
    a.i("v_cmp_eq_u32 s[58:59], 0, v3")
    a.i("s_waitcnt vmcnt(0)")
    a.i("s_barrier")
    for w in range(4):
        a.i("s_cmp_lg_u32 s6, %d" % w)
        a.i("s_cbranch_scc1 K1_PL_%s_%d" % (which, w))
        for q in range(7):
            f = 7 * w + q
            ft, s = f >> 1, f & 1
            b = 16 + 4 * q
            off = ft * 64 + 16 * s * 1024
            a.i("ds_read_b64_tr_b16 v[%d:%d], v5 offset:%d" % (b, b + 1, off))
            a.i("ds_read_b64_tr_b16 v[%d:%d], v5 offset:%d" % (b + 2, b + 3, off + 8 * 1024))
        a.i("s_waitcnt lgkmcnt(0)")
        for q in range(7):
            f = 7 * w + q
            ft, s = f >> 1, f & 1
            b = 16 + 4 * q
            if which == "wo" and s == 1:
                a.i("v_cndmask_b32 v%d, 0, v%d, s[58:59]" % (b + 2, b + 2))
                a.i("v_cndmask_b32 v%d, 0, v%d, s[58:59]" % (b + 3, b + 3))
            nst = 32 if which == "wo" else 112
            a.i("s_lshl_b32 s10, s3, 11")
            a.i("s_add_u32 s10, s10, 0x%x" % ((WOF if which == "wo" else W2F) + (ft * nst + s) * 1024))
            a.i("buffer_store_dwordx4 v[%d:%d], v6, s[36:39], s10 offen" % (b, b + 3))
        a.i("s_endpgm")
        a.label("K1_PL_%s_%d" % (which, w))
    a.i("s_endpgm")


def gen_stats(a):
    a.i("v_lshrrev_b32 v8, 6, v0")
    a.i("s_nop 0")
    a.i("v_readfirstlane_b32 s6, v8")
    a.i("v_and_b32 v1, 63, v0")
    a.i("v_and_b32 v2, 31, v0")
    a.i("v_bfe_u32 v3, v0, 5, 1")
    a.i("v_lshlrev_b32 v4, 4, v1")
    srd(a, 48, P_X, S * 896)
    a.i("s_mul_i32 s8, s3, %d" % (32 * 896))
    a.i("s_mul_i32 s9, s6, 7168")
    a.i("s_add_u32 s8, s8, s9")
    a.i("s_add_u32 s9, s9, 1024")
    for i in range(7):
        a.i("s_mov_b32 m0, s9")
        a.i("buffer_load_dwordx4 v4, s[48:51], s8 offen lds")
        if i < 6:
            a.i("s_add_u32 s8, s8, 1024")
            a.i("s_add_u32 s9, s9, 1024")
    a.i("v_mul_u32_u24 v5, 896, v2")
    a.i("v_lshl_add_u32 v5, v3, 4, v5")
    a.i("s_mul_i32 s9, s6, 224")
    a.i("v_add_u32 v5, s9, v5")
    a.i("v_mov_b32 v10, 0")
    a.i("v_mov_b32 v11, 0")
    a.i("v_mov_b32 v12, 0x3f803f80")
    a.i("s_waitcnt vmcnt(0)")
    a.i("s_barrier")
    for s in range(7):
        a.i("ds_read_b128 v[%d:%d], v5 offset:%d" % (16 + 4 * s, 19 + 4 * s, 1024 + 32 * s))
    a.i("s_mul_i32 s8, s3, 28")
    a.i("s_mul_i32 s9, s6, 7")
    a.i("s_add_u32 s8, s8, s9")
    a.i("s_lshl_b32 s8, s8, 10")
    a.i("s_add_u32 s8, s8, 0x%x" % XF)
    a.i("s_add_u32 s9, s8, 4096")
    a.i("s_waitcnt lgkmcnt(0)")
    for k in range(28):
        a.i("v_dot2_f32_bf16 v10, v%d, v12, v10" % (16 + k))
        a.i("v_dot2_f32_bf16 v11, v%d, v%d, v11" % (16 + k, 16 + k))
    a.i("v_permlane32_swap_b32 v10, v11")
    a.i("v_add_f32 v10, v10, v11")
    a.i("v_lshlrev_b32 v6, 2, v0")
    a.i("ds_write_b32 v6, v10")
    a.i("s_waitcnt lgkmcnt(0)")
    a.i("s_barrier")
    a.i("v_lshlrev_b32 v6, 2, v2")
    for w in range(4):
        a.i("ds_read_b32 v%d, v6 offset:%d" % (50 + w, w * 256))
        a.i("ds_read_b32 v%d, v6 offset:%d" % (54 + w, w * 256 + 128))
    a.i("s_waitcnt lgkmcnt(0)")
    a.i("v_add_f32 v50, v50, v51")
    a.i("v_add_f32 v52, v52, v53")
    a.i("v_add_f32 v10, v50, v52")
    a.i("v_add_f32 v54, v54, v55")
    a.i("v_add_f32 v56, v56, v57")
    a.i("v_add_f32 v11, v54, v56")
    a.i("s_mov_b32 s10, 0x%x" % f2u(1.0 / 448))
    a.i("v_mul_f32 v10, s10, v10")
    a.i("v_mul_f32 v11, s10, v11")
    a.i("v_fma_f32 v11, -v10, v10, v11")
    a.i("v_max_f32 v11, 0, v11")
    a.i("v_add_f32 v11, 0x%x, v11" % f2u(1e-5))
    a.i("v_rsq_f32 v12, v11")
    a.i("v_mul_f32 v13, v12, v10")
    a.i("v_sub_f32 v13, 0, v13")
    for k in range(28):
        a.i("v_lshlrev_b32 v60, 16, v%d" % (16 + k))
        a.i("v_and_b32 v61, 0xffff0000, v%d" % (16 + k))
        a.i("v_fma_f32 v60, v60, v12, v13")
        a.i("v_fma_f32 v61, v61, v12, v13")
        a.i("v_cvt_pk_bf16_f32 v%d, v60, v61" % (16 + k))
    for s in range(7):
        a.i("buffer_store_dwordx4 v[%d:%d], v4, s[36:39], s%d offen offset:%d" % (16 + 4 * s, 19 + 4 * s, 8 if s < 4 else 9, (s & 3) * 1024))
    a.i("s_endpgm")


def gen_k1(a):
    name = "prep_kernel"
    header(a, name)
    a.i("s_cmp_ge_u32 s2, 268")
    a.i("s_cbranch_scc1 K1_END")
    load_ptrs(a)
    srd(a, 36, P_WS, WS_END)
    a.i("s_cmp_lt_u32 s2, 48")
    a.i("s_cbranch_scc1 K1_P")
    a.i("s_cmp_lt_u32 s2, 132")
    a.i("s_cbranch_scc1 K1_A")
    a.i("s_cmp_lt_u32 s2, 196")
    a.i("s_cbranch_scc1 K1_S")
    a.i("s_cmp_lt_u32 s2, 212")
    a.i("s_cbranch_scc1 K1_WO")
    a.i("s_sub_u32 s3, s2, 212")
    gen_plain(a, "w2")
    a.label("K1_S")
    a.i("s_sub_u32 s3, s2, 132")
    gen_stats(a)
    a.label("K1_A")
    a.i("s_sub_u32 s3, s2, 48")
    gen_scaled(a, "A")
    a.label("K1_P")
    a.i("s_mov_b32 s3, s2")
    gen_modprod(a)
    a.label("K1_WO")
    a.i("s_sub_u32 s3, s2, 196")
    gen_plain(a, "wo")
    a.label("K1_END")
    a.i("s_endpgm")
    return name, 256, "grid=(268,1,1) block=(256,1,1) lds=33792"


HEADER_COMMENT = """; Kernarg layout for this problem (88 bytes, ptrs only, base s[0:1]):
;   offset  16: d_in[2] A_wo  shape=(448, 448) dtype=bfloat16
;   offset  80: d_ws      workspace
"""


def build(kernels):
    a = Asm()
    a.uid = 0
    infos = []
    bodies = []
    for g in kernels:
        infos.append(g(a))
    txt = HEADER_COMMENT
    for name, vg, launch in infos:
        txt += "; @launch kernel=%s %s\n" % (name, launch)
    txt += '.amdgcn_target "amdgcn-amd-amdhsa--gfx950"\n.text\n'
    txt += a.text()
    txt += '.section .rodata,"a"\n'
    for name, vg, launch in infos:
        if isinstance(vg, tuple):
            d = descriptor(name, vg[0], accum=vg[1])
        else:
            d = descriptor(name, vg)
        txt += ".p2align 6\n" + d
    return txt


if __name__ == "__main__":
    ks = [gen_k1]
    import importlib
    for m in ("gen2", "gen3", "gen4"):
        try:
            ks += importlib.import_module(m).KERNELS
        except ImportError:
            pass
    out = sys.argv[1] if len(sys.argv) > 1 else "adaLN_cond__softmax_full_mha__dense_activation_silu__prompt.s"
    open(out, "w").write(build(ks))
    print("wrote", out)
```

```python
import sys, os
sys.path.insert(0, os.path.dirname(__file__))
from asmgen import Asm

S, D, H, DH, F = 2048, 448, 16, 28, 1792
MOD = 0x0
STAT1 = 0x4000
UT1 = 0x8000
UT2 = 0x40000
ST2P = 0x80000
WQF = 0x100000
WOF = 0x280000
W1F = 0x300000
W2F = 0x500000
QKVF = 0x700000
OF = 0xD00000
X1F = 0xF00000
HIDF = 0x1100000
XF = 0x1800000
PART = 0x1A00000
CNT = 0x1A80000
WS_END = 0x1B00000

LOG2E = 1.4426950408889634
import struct


def f2u(x):
    return struct.unpack("<I", struct.pack("<f", x))[0]


def vr(a, n=1):
    return "v%d" % a if n == 1 else "v[%d:%d]" % (a, a + n - 1)


def sr(a, n=1):
    return "s%d" % a if n == 1 else "s[%d:%d]" % (a, a + n - 1)


def srd(a, base, ptr, size):
    a.i("s_mov_b32 s%d, s%d" % (base, ptr))
    a.i("s_mov_b32 s%d, s%d" % (base + 1, ptr + 1))
    a.i("s_mov_b32 s%d, 0x%x" % (base + 2, size))
    a.i("s_mov_b32 s%d, 0x00020000" % (base + 3))


def load_ptrs(a):
    a.i("s_load_dwordx16 s[16:31], s[0:1], 0")
    a.i("s_load_dwordx2 s[32:33], s[0:1], 64")
    a.i("s_load_dwordx2 s[34:35], s[0:1], 80")
    a.i("s_waitcnt lgkmcnt(0)")


P_X, P_WQKV, P_WO, P_BX, P_W1, P_W2, P_C, P_WMOD, P_OUT, P_WS = 16, 18, 20, 22, 24, 26, 28, 30, 32, 34


def header(a, name):
    a.raw(".globl %s" % name)
    a.raw(".p2align 8")
    a.raw(".type %s,@function" % name)
    a.label(name)


def descriptor(name, vgpr, sgpr=102, accum=None):
    if accum is None:
        accum = (min(vgpr, 256) + 3) // 4 * 4
    return """.amdhsa_kernel %s
  .amdhsa_next_free_vgpr %d
  .amdhsa_next_free_sgpr %d
  .amdhsa_accum_offset %d
  .amdhsa_group_segment_fixed_size 0
  .amdhsa_kernarg_size 88
  .amdhsa_user_sgpr_count 2
  .amdhsa_user_sgpr_kernarg_segment_ptr 1
  .amdhsa_system_sgpr_workgroup_id_x 1
.end_amdhsa_kernel
""" % (name, vgpr, sgpr, accum)


STAMPS = os.environ.get("STAMPS", "0") == "1"
DBGA = 0x2000000


def stamp(a, idx):
    if not STAMPS:
        return
    a.i("s_memtime s[60:61]")
    a.i("s_waitcnt lgkmcnt(0)")
    a.i("s_mov_b32 s%d, s60" % (64 + idx))


def stamps_out(a, kidx, nst, wreg=6):
    if not STAMPS:
        return
    srd(a, 92, P_WS, 0x4000000)
    a.i("s_lshl_b32 s60, s2, 3")
    a.i("s_add_u32 s60, s60, s%d" % wreg)
    a.i("s_lshl_b32 s60, s60, 6")
    a.i("s_add_u32 s60, s60, 0x%x" % (DBGA + kidx * 512 * 8 * 64))
    a.i("v_mov_b32 v15, 0")
    for i in range(nst):
        a.i("v_mov_b32 v14, s%d" % (64 + i))
        a.i("buffer_store_dword v14, v15, s[92:95], s60 offen offset:%d" % (4 * i))


def round_bf16(a, v, tmp=None):
    a.i("v_cvt_pk_bf16_f32 %s, %s, %s" % (vr(v), vr(v), vr(v)))
    a.i("v_lshlrev_b32 %s, 16, %s" % (vr(v), vr(v)))


def k1_end(a):
    if STAMPS:
        a.i("s_waitcnt vmcnt(0)")
        stamp(a, 1)
        a.i("v_readfirstlane_b32 s6, v0")
        a.i("s_lshr_b32 s6, s6, 6")
        stamps_out(a, 0, 2)


def gen_modprod(a):
    srd(a, 40, P_C, 896)
    srd(a, 44, P_WMOD, 448 * 5376)
    a.i("s_mul_i32 s4, s3, 43")
    a.i("s_lshr_b32 s4, s4, 8")
    a.i("s_mul_i32 s5, s4, 6")
    a.i("s_sub_u32 s5, s3, s5")
    a.i("v_lshrrev_b32 v8, 6, v0")
    a.i("s_nop 0")
    a.i("v_readfirstlane_b32 s6, v8")
    a.i("v_and_b32 v1, 63, v0")
    a.i("s_mul_i32 s7, s4, 56")
    a.i("s_mul_i32 s8, s6, 14")
    a.i("s_add_u32 s7, s7, s8")
    a.i("v_mov_b32 v4, 0")
    a.i("s_lshl_b32 s9, s7, 1")
    for q in range(7):
        a.i("buffer_load_dword v%d, v4, s[40:43], s9 offen offset:%d" % (10 + q, 4 * q))
    a.i("s_lshl_b32 s10, s5, 10")
    a.i("v_lshlrev_b32 v5, 4, v1")
    a.i("v_add_u32 v5, s10, v5")
    a.i("v_cmp_gt_u32 vcc, 5376, v5")
    a.i("v_mov_b32 v6, 0x40000000")
    a.i("v_cndmask_b32 v5, v6, v5, vcc")
    a.i("s_mul_i32 s8, s7, 5376")
    for i in range(14):
        a.i("buffer_load_dwordx4 v[%d:%d], v5, s[44:47], s8 offen" % (24 + 4 * i, 27 + 4 * i))
        if i < 13:
            a.i("s_add_u32 s8, s8, 5376")
    a.i("s_waitcnt vmcnt(14)")
    a.i("s_mov_b32 s51, 0x%x" % f2u(-LOG2E))
    for q in range(7):
        a.i("v_lshlrev_b32 v%d, 16, v%d" % (80 + 2 * q, 10 + q))
        a.i("v_and_b32 v%d, 0xffff0000, v%d" % (81 + 2 * q, 10 + q))
    for k in range(14):
        a.i("v_mul_f32 v%d, s51, v%d" % (100 + k, 80 + k))
    for k in range(14):
        a.i("v_exp_f32 v%d, v%d" % (100 + k, 100 + k))
    for k in range(14):
        a.i("v_add_f32 v%d, 1.0, v%d" % (100 + k, 100 + k))
    for k in range(14):
        a.i("v_rcp_f32 v%d, v%d" % (100 + k, 100 + k))
    for k in range(14):
        a.i("v_mul_f32 v%d, v%d, v%d" % (80 + k, 80 + k, 100 + k))
    for q in range(7):
        a.i("v_cvt_pk_bf16_f32 v%d, v%d, v%d" % (100 + q, 80 + 2 * q, 81 + 2 * q))
    for q in range(7):
        a.i("v_lshlrev_b32 v%d, 16, v%d" % (80 + 2 * q, 100 + q))
        a.i("v_and_b32 v%d, 0xffff0000, v%d" % (81 + 2 * q, 100 + q))
    for k in range(8):
        a.i("v_mov_b32 v%d, 0" % (100 + k))
    for i in range(14):
        a.i("s_waitcnt vmcnt(%d)" % (13 - i))
        t = 110 + 8 * (i & 1)
        for d in range(4):
            w = 24 + 4 * i + d
            a.i("v_lshlrev_b32 v%d, 16, v%d" % (t + 2 * d, w))
            a.i("v_and_b32 v%d, 0xffff0000, v%d" % (t + 2 * d + 1, w))
        for k in range(8):
            a.i("v_fmac_f32 v%d, v%d, v%d" % (100 + k, 80 + i, t + k))
    a.i("v_lshlrev_b32 v4, 5, v0")
    a.i("ds_write_b128 v4, v[100:103]")
    a.i("ds_write_b128 v4, v[104:107] offset:16")
    a.i("s_waitcnt lgkmcnt(0)")
    a.i("s_barrier")
    a.i("v_lshlrev_b32 v4, 3, v0")
    for w in range(4):
        a.i("ds_read_b64 v[%d:%d], v4 offset:%d" % (20 + 2 * w, 21 + 2 * w, w * 2048))
    a.i("s_lshl_b32 s10, s5, 11")
    a.i("v_add_u32 v5, s10, v4")
    a.i("v_cmp_gt_u32 vcc, 10752, v5")
    a.i("v_cndmask_b32 v5, v6, v5, vcc")
    a.i("s_mul_i32 s8, s4, 10752")
    a.i("s_add_u32 s8, s8, 0x%x" % PART)
    a.i("s_waitcnt lgkmcnt(0)")
    for k in range(2):
        a.i("v_add_f32 v%d, v%d, v%d" % (20 + k, 20 + k, 22 + k))
        a.i("v_add_f32 v%d, v%d, v%d" % (24 + k, 24 + k, 26 + k))
        a.i("v_add_f32 v%d, v%d, v%d" % (20 + k, 20 + k, 24 + k))
    a.i("buffer_store_dwordx2 v[20:21], v5, s[36:39], s8 offen")
    k1_end(a)
    a.i("s_endpgm")


def sum_mod(a, base0, base1, s_kt, add_one, to_global=False):
    a.i("s_cmp_lg_u32 s6, 0")
    a.i("s_cbranch_scc1 SM_SKIP_%d" % a.uid)
    a.i("v_and_b32 v12, 31, v0")
    a.i("v_bfe_u32 v13, v0, 5, 1")
    a.i("v_mov_b32 v14, %d" % (base0 * 4))
    a.i("v_mov_b32 v15, %d" % (base1 * 4))
    a.i("v_cmp_eq_u32 vcc, 0, v13")
    a.i("v_cndmask_b32 v14, v15, v14, vcc")
    a.i("v_lshl_add_u32 v14, v12, 2, v14")
    a.i("s_lshl_b32 s12, s%d, 7" % s_kt)
    a.i("s_add_u32 s13, s12, 0x%x" % PART)
    for rg in range(8):
        a.i("buffer_load_dword v%d, v14, s[36:39], s13 offen" % (20 + rg))
        if rg < 7:
            a.i("s_add_u32 s13, s13, 10752")
    a.i("s_waitcnt vmcnt(0)")
    for st in (4, 2, 1):
        for k in range(st):
            a.i("v_add_f32 v%d, v%d, v%d" % (20 + k, 20 + k, 20 + k + st))
    round_bf16(a, 20)
    if to_global:
        a.i("s_add_u32 s13, s12, 0x%x" % MOD)
        a.i("buffer_store_dword v20, v14, s[36:39], s13 offen")
    else:
        if add_one:
            a.i("v_add_f32 v21, 1.0, v20")
            round_bf16(a, 21)
            a.i("v_cndmask_b32 v20, v20, v21, vcc")
        a.i("v_lshlrev_b32 v15, 2, v0")
        a.i("ds_write_b32 v15, v20 offset:16384")
        a.i("s_waitcnt lgkmcnt(0)")
    a.label("SM_SKIP_%d" % a.uid)
    a.uid += 1
    if not to_global:
        a.i("s_waitcnt vmcnt(0)")
        a.i("s_barrier")


def tr_addr(a, vdst, pitch, hrows):
    a.i("v_bfe_u32 v8, v0, 2, 2")
    a.i("v_bfe_u32 v9, v0, 5, 1")
    a.i("v_mad_u32_u24 v8, v9, %d, v8" % hrows)
    a.i("v_mul_u32_u24 v%d, %d, v8" % (vdst, pitch))
    a.i("v_and_b32 v8, 3, v0")
    a.i("v_lshl_add_u32 v%d, v8, 3, v%d" % (vdst, vdst))
    a.i("v_bfe_u32 v8, v0, 4, 1")
    a.i("v_lshl_add_u32 v%d, v8, 5, v%d" % (vdst, vdst))


def gen_scaled(a, which):
    a.i("s_mul_i32 s4, s3, 4682")
    a.i("s_lshr_b32 s4, s4, 16")
    a.i("s_mul_i32 s5, s4, 14")
    a.i("s_sub_u32 s5, s3, s5")
    a.i("v_lshrrev_b32 v8, 6, v0")
    a.i("s_nop 0")
    a.i("v_readfirstlane_b32 s6, v8")
    a.i("v_and_b32 v244, 63, v0")
    a.i("v_and_b32 v245, 31, v0")
    a.i("v_bfe_u32 v246, v0, 5, 1")
    stride = 2688 if which == "A" else 3584
    if which == "A":
        srd(a, 48, P_WQKV, 448 * 2688)
        a.i("s_mul_i32 s7, s4, 448")
    else:
        srd(a, 48, P_W1, 448 * 3584)
        a.i("s_lshl_b32 s7, s4, 9")
    a.i("v_mul_u32_u24 v247, %d, v246" % stride)
    a.i("v_lshl_add_u32 v247, v245, 4, v247")
    a.i("s_lshl_b32 s8, s5, 5")
    a.i("s_lshl_b32 s9, s6, 3")
    a.i("s_add_u32 s8, s8, s9")
    a.i("s_mul_i32 s8, s8, %d" % stride)
    a.i("s_add_u32 s8, s8, s7")
    a.i("s_lshl_b32 s9, s6, 12")
    for i in range(4):
        a.i("s_mov_b32 m0, s9")
        a.i("buffer_load_dwordx4 v247, s[48:51], s8 offen lds")
        if i < 3:
            a.i("s_add_u32 s8, s8, %d" % (2 * stride))
            a.i("s_add_u32 s9, s9, 1024")
    hrows = 4
    tr_addr(a, 248, 512, hrows)
    csz = 56 if which == "A" else 64
    a.i("s_mul_i32 s9, s6, %d" % (2 * csz))
    a.i("v_add_u32 v248, s9, v248")
    if which == "B":
        sum_mod(a, 1792, 1344, 5, True)
        a.i("v_lshlrev_b32 v249, 4, v246")
        for r in range(2):
            for s in range(2):
                b = 210 + r * 16 + s * 8
                a.i("ds_read_b128 v[%d:%d], v249 offset:%d" % (b, b + 3, 16384 + r * 128 + s * 64))
                a.i("ds_read_b128 v[%d:%d], v249 offset:%d" % (b + 4, b + 7, 16384 + r * 128 + s * 64 + 32))
    else:
        a.i("s_waitcnt vmcnt(0)")
        a.i("s_barrier")
    r2 = 8
    for tl in range(2):
        for s in range(2):
            b = 100 + (tl * 2 + s) * 4
            off = tl * csz + 16 * s * 512
            a.i("ds_read_b64_tr_b16 v[%d:%d], v248 offset:%d" % (b, b + 1, off))
            a.i("ds_read_b64_tr_b16 v[%d:%d], v248 offset:%d" % (b + 2, b + 3, off + r2 * 512))
    a.i("v_lshlrev_b32 v250, 4, v244")
    a.i("v_lshlrev_b32 v251, 2, v244")
    a.i("v_cmp_gt_u32 s[58:59], 28, v245")
    a.i("s_waitcnt lgkmcnt(0)")
    if which == "A":
        for k in range(16):
            a.i("v_cndmask_b32 v%d, 0, v%d, s[58:59]" % (100 + k, 100 + k))
    ntile = 48 if which == "A" else 56
    for tl in range(2):
        if which == "A":
            a.i("s_and_b32 s12, s4, 1")
            a.i("s_lshl_b32 s12, s12, 3")
            a.i("s_lshl_b32 s13, s6, 1")
            a.i("s_add_u32 s12, s12, s13")
            a.i("s_add_u32 s12, s12, %d" % tl)
            a.i("s_mul_i32 s12, s12, 3")
            a.i("s_lshr_b32 s13, s4, 1")
            a.i("s_add_u32 s%d, s12, s13" % (10 + tl))
        else:
            a.i("s_lshl_b32 s12, s4, 3")
            a.i("s_lshl_b32 s13, s6, 1")
            a.i("s_add_u32 s12, s12, s13")
            a.i("s_add_u32 s%d, s12, %d" % (10 + tl, tl))
    if which == "B":
        a.i("v_mov_b32 v156, 0x3f803f80")
    for tl in range(2):
        if which == "B":
            a.i("v_mov_b32 v150, 0")
            a.i("v_mov_b32 v151, 0")
        for s in range(2):
            fb = 100 + (tl * 2 + s) * 4
            wb = 170
            if which == "B":
                for d in range(4):
                    a.i("v_lshlrev_b32 v%d, 16, v%d" % (wb + 2 * d, fb + d))
                    a.i("v_and_b32 v%d, 0xffff0000, v%d" % (wb + 2 * d + 1, fb + d))
                for j in range(8):
                    a.i("v_fmac_f32 v151, v%d, v%d" % (wb + j, 226 + s * 8 + j))
                for j in range(8):
                    a.i("v_mul_f32 v%d, v%d, v%d" % (wb + j, wb + j, 210 + s * 8 + j))
                for jj in range(4):
                    a.i("v_cvt_pk_bf16_f32 v%d, v%d, v%d" % (fb + jj, wb + 2 * jj, wb + 2 * jj + 1))
                for jj in range(4):
                    a.i("v_dot2_f32_bf16 v150, v%d, v156, v150" % (fb + jj))
            a.i("s_mul_i32 s15, s%d, 28" % (10 + tl))
            a.i("s_lshl_b32 s12, s5, 1")
            a.i("s_add_u32 s15, s15, s12")
            a.i("s_add_u32 s15, s15, %d" % s)
            a.i("s_lshl_b32 s15, s15, 10")
            a.i("s_add_u32 s15, s15, 0x%x" % (WQF if which == "A" else W1F))
            a.i("buffer_store_dwordx4 v[%d:%d], v250, s[36:39], s15 offen" % (fb, fb + 3))
        if which == "B":
            a.i("v_permlane32_swap_b32 v150, v151")
            a.i("v_add_f32 v150, v150, v151")
            a.i("s_lshl_b32 s15, s%d, 12" % (10 + tl))
            a.i("s_lshl_b32 s12, s5, 2")
            a.i("s_add_u32 s15, s15, s12")
            a.i("s_add_u32 s15, s15, 0x%x" % UT2)
            a.i("v_lshlrev_b32 v252, 6, v244")
            a.i("buffer_store_dword v150, v252, s[36:39], s15 offen")
    if which == "A":
        k1_end(a)
    a.i("s_endpgm")


def gen_plain(a, which):
    a.i("v_lshrrev_b32 v8, 6, v0")
    a.i("s_nop 0")
    a.i("v_readfirstlane_b32 s6, v8")
    a.i("v_and_b32 v1, 63, v0")
    a.i("v_bfe_u32 v3, v0, 5, 1")
    a.i("v_lshlrev_b32 v6, 4, v1")
    nrow = 28 if which == "wo" else 32
    if which == "wo":
        srd(a, 48, P_WO, 448 * 896)
    else:
        srd(a, 48, P_W2, 1792 * 896)
    per = nrow // 4
    a.i("s_mul_i32 s8, s3, %d" % nrow)
    a.i("s_mul_i32 s9, s6, %d" % per)
    a.i("s_add_u32 s8, s8, s9")
    a.i("s_mul_i32 s8, s8, 896")
    a.i("s_lshl_b32 s9, s9, 10")
    for i in range(per):
        a.i("s_mov_b32 m0, s9")
        a.i("buffer_load_dwordx4 v6, s[48:51], s8 offen lds")
        if i < per - 1:
            a.i("s_add_u32 s8, s8, 896")
            a.i("s_add_u32 s9, s9, 1024")
    tr_addr(a, 5, 1024, 4)
    a.i("v_cmp_eq_u32 s[58:59], 0, v3")
    a.i("s_waitcnt vmcnt(0)")
    a.i("s_barrier")
    for w in range(4):
        a.i("s_cmp_lg_u32 s6, %d" % w)
        a.i("s_cbranch_scc1 K1_PL_%s_%d" % (which, w))
        for q in range(7):
            f = 7 * w + q
            ft, s = f >> 1, f & 1
            b = 16 + 4 * q
            off = ft * 64 + 16 * s * 1024
            a.i("ds_read_b64_tr_b16 v[%d:%d], v5 offset:%d" % (b, b + 1, off))
            a.i("ds_read_b64_tr_b16 v[%d:%d], v5 offset:%d" % (b + 2, b + 3, off + 8 * 1024))
        a.i("s_waitcnt lgkmcnt(0)")
        for q in range(7):
            f = 7 * w + q
            ft, s = f >> 1, f & 1
            b = 16 + 4 * q
            if which == "wo" and s == 1:
                a.i("v_cndmask_b32 v%d, 0, v%d, s[58:59]" % (b + 2, b + 2))
                a.i("v_cndmask_b32 v%d, 0, v%d, s[58:59]" % (b + 3, b + 3))
            nst = 32 if which == "wo" else 112
            a.i("s_lshl_b32 s10, s3, 11")
            a.i("s_add_u32 s10, s10, 0x%x" % ((WOF if which == "wo" else W2F) + (ft * nst + s) * 1024))
            a.i("buffer_store_dwordx4 v[%d:%d], v6, s[36:39], s10 offen" % (b, b + 3))
        k1_end(a)
        a.i("s_endpgm")
        a.label("K1_PL_%s_%d" % (which, w))
    a.i("s_endpgm")


def gen_stats(a):
    a.i("v_lshrrev_b32 v8, 6, v0")
    a.i("s_nop 0")
    a.i("v_readfirstlane_b32 s6, v8")
    a.i("v_and_b32 v1, 63, v0")
    a.i("v_and_b32 v2, 31, v0")
    a.i("v_bfe_u32 v3, v0, 5, 1")
    a.i("v_lshlrev_b32 v4, 4, v1")
    srd(a, 48, P_X, S * 896)
    a.i("s_mul_i32 s8, s3, %d" % (32 * 896))
    a.i("s_mul_i32 s9, s6, 7168")
    a.i("s_add_u32 s8, s8, s9")
    a.i("s_add_u32 s9, s9, 1024")
    for i in range(7):
        a.i("s_mov_b32 m0, s9")
        a.i("buffer_load_dwordx4 v4, s[48:51], s8 offen lds")
        if i < 6:
            a.i("s_add_u32 s8, s8, 1024")
            a.i("s_add_u32 s9, s9, 1024")
    a.i("v_mul_u32_u24 v5, 896, v2")
    a.i("v_lshl_add_u32 v5, v3, 4, v5")
    a.i("s_mul_i32 s9, s6, 224")
    a.i("v_add_u32 v5, s9, v5")
    a.i("v_mov_b32 v10, 0")
    a.i("v_mov_b32 v11, 0")
    a.i("v_mov_b32 v12, 0x3f803f80")
    a.i("s_waitcnt vmcnt(0)")
    a.i("s_barrier")
    for s in range(7):
        a.i("ds_read_b128 v[%d:%d], v5 offset:%d" % (16 + 4 * s, 19 + 4 * s, 1024 + 32 * s))
    a.i("s_mul_i32 s8, s3, 28")
    a.i("s_mul_i32 s9, s6, 7")
    a.i("s_add_u32 s8, s8, s9")
    a.i("s_lshl_b32 s8, s8, 10")
    a.i("s_add_u32 s8, s8, 0x%x" % XF)
    a.i("s_add_u32 s9, s8, 4096")
    a.i("s_waitcnt lgkmcnt(0)")
    for k in range(28):
        a.i("v_dot2_f32_bf16 v10, v%d, v12, v10" % (16 + k))
        a.i("v_dot2_f32_bf16 v11, v%d, v%d, v11" % (16 + k, 16 + k))
    a.i("v_permlane32_swap_b32 v10, v11")
    a.i("v_add_f32 v10, v10, v11")
    a.i("v_lshlrev_b32 v6, 2, v0")
    a.i("ds_write_b32 v6, v10")
    a.i("s_waitcnt lgkmcnt(0)")
    a.i("s_barrier")
    a.i("v_lshlrev_b32 v6, 2, v2")
    for w in range(4):
        a.i("ds_read_b32 v%d, v6 offset:%d" % (50 + w, w * 256))
        a.i("ds_read_b32 v%d, v6 offset:%d" % (54 + w, w * 256 + 128))
    a.i("s_waitcnt lgkmcnt(0)")
    a.i("v_add_f32 v50, v50, v51")
    a.i("v_add_f32 v52, v52, v53")
    a.i("v_add_f32 v10, v50, v52")
    a.i("v_add_f32 v54, v54, v55")
    a.i("v_add_f32 v56, v56, v57")
    a.i("v_add_f32 v11, v54, v56")
    a.i("s_mov_b32 s10, 0x%x" % f2u(1.0 / 448))
    a.i("v_mul_f32 v10, s10, v10")
    a.i("v_mul_f32 v11, s10, v11")
    a.i("v_fma_f32 v11, -v10, v10, v11")
    a.i("v_max_f32 v11, 0, v11")
    a.i("v_add_f32 v11, 0x%x, v11" % f2u(1e-5))
    a.i("v_rsq_f32 v12, v11")
    a.i("v_mul_f32 v13, v12, v10")
    a.i("v_sub_f32 v13, 0, v13")
    for k in range(28):
        a.i("v_lshlrev_b32 v60, 16, v%d" % (16 + k))
        a.i("v_and_b32 v61, 0xffff0000, v%d" % (16 + k))
        a.i("v_fma_f32 v60, v60, v12, v13")
        a.i("v_fma_f32 v61, v61, v12, v13")
        a.i("v_cvt_pk_bf16_f32 v%d, v60, v61" % (16 + k))
    for s in range(7):
        a.i("buffer_store_dwordx4 v[%d:%d], v4, s[36:39], s%d offen offset:%d" % (16 + 4 * s, 19 + 4 * s, 8 if s < 4 else 9, (s & 3) * 1024))
    k1_end(a)
    a.i("s_endpgm")


def gen_k1(a):
    name = "prep_kernel"
    header(a, name)
    a.i("s_cmp_ge_u32 s2, 268")
    a.i("s_cbranch_scc1 K1_END")
    stamp(a, 0)
    load_ptrs(a)
    srd(a, 36, P_WS, WS_END)
    a.i("s_cmp_lt_u32 s2, 48")
    a.i("s_cbranch_scc1 K1_P")
    a.i("s_cmp_lt_u32 s2, 132")
    a.i("s_cbranch_scc1 K1_A")
    a.i("s_cmp_lt_u32 s2, 196")
    a.i("s_cbranch_scc1 K1_S")
    a.i("s_cmp_lt_u32 s2, 212")
    a.i("s_cbranch_scc1 K1_WO")
    a.i("s_sub_u32 s3, s2, 212")
    gen_plain(a, "w2")
    a.label("K1_S")
    a.i("s_sub_u32 s3, s2, 132")
    gen_stats(a)
    a.label("K1_A")
    a.i("s_sub_u32 s3, s2, 48")
    gen_scaled(a, "A")
    a.label("K1_P")
    a.i("s_mov_b32 s3, s2")
    a.i("v_lshlrev_b32 v4, 7, v0")
    a.i("v_mov_b32 v5, 0")
    a.i("v_cmp_gt_u32 vcc, 16, v0")
    a.i("v_mov_b32 v6, 0x40000000")
    a.i("v_cndmask_b32 v4, v6, v4, vcc")
    a.i("s_mov_b32 s4, 0x%x" % CNT)
    a.i("buffer_store_dword v5, v4, s[36:39], s4 offen")
    gen_modprod(a)
    a.label("K1_WO")
    a.i("s_sub_u32 s3, s2, 196")
    gen_plain(a, "wo")
    a.label("K1_END")
    a.i("s_endpgm")
    return name, 256, "grid=(268,1,1) block=(256,1,1) lds=33792"


HEADER_COMMENT = """; Kernarg layout for this problem (88 bytes, ptrs only, base s[0:1]):
;   offset  16: d_in[2] A_wo  shape=(448, 448) dtype=bfloat16
;   offset  80: d_ws      workspace
"""


def build(kernels):
    a = Asm()
    a.uid = 0
    infos = []
    bodies = []
    for g in kernels:
        infos.append(g(a))
    txt = HEADER_COMMENT
    for name, vg, launch in infos:
        txt += "; @launch kernel=%s %s\n" % (name, launch)
    txt += '.amdgcn_target "amdgcn-amd-amdhsa--gfx950"\n.text\n'
    body = a.text().split("\n")
    body = [l + " sc1" if l.strip().startswith("buffer_store_dwordx4") and "sc1" not in l else l for l in body]
    txt += "\n".join(body)
    txt += '.section .rodata,"a"\n'
    for name, vg, launch in infos:
        if isinstance(vg, tuple):
            d = descriptor(name, vg[0], accum=vg[1])
        else:
            d = descriptor(name, vg)
        txt += ".p2align 6\n" + d
    return txt


if __name__ == "__main__":
    ks = [gen_k1]
    import importlib
    for m in ("gen2", "gen3", "gen4"):
        try:
            ks += importlib.import_module(m).KERNELS
        except ImportError:
            pass
    out = sys.argv[1] if len(sys.argv) > 1 else "adaLN_cond__softmax_full_mha__dense_activation_silu__prompt.s"
    open(out, "w").write(build(ks))
    print("wrote", out)
```
